```python
import torch

def _softmax(x, axis=-1):
    return torch.softmax(x, dim=axis)
def _gelu(x):
    return torch.nn.functional.gelu(x, approximate="tanh")
def _silu(x):
    return torch.nn.functional.silu(x)
def _sigmoid(x):
    return torch.sigmoid(x)
def _layernorm(x, axis=-1, eps=1e-5):
    m = x.mean(dim=axis, keepdim=True)
    v = x.var(dim=axis, keepdim=True, unbiased=False)
    return (x - m) / torch.sqrt(v + eps)
def _scatter_add(tgt, idx, src, axis=0):
    return tgt.clone().index_add_(axis, idx, src)
def _segment_sum(src, seg, n):
    out = torch.zeros((n,) + src.shape[1:], dtype=src.dtype)
    return out.index_add_(0, seg, src)
def _pad(x, pw):
    flat = tuple(v for pair in reversed(pw) for v in pair)
    return torch.nn.functional.pad(x, flat)

kernel_name = 'parallel_sum__gqa_block_cached__swiglu_ffn__decode'

def setup_inputs():

    _w = (lambda a: (lambda t: t.to(torch.bfloat16) if t.is_floating_point() else t)(torch.as_tensor(a)))
    def _A_setup():
        B, Sq, D = 2, 1, 1024
        Hq, Hkv, Sk, Dh = 32, 4, 32768, 128
        assert Hq % Hkv == 0, (Hq, Hkv)
        return {
            "x": _w((lambda *s: torch.randn(*s, dtype=torch.bfloat16) * 0.05)(B, Sq, D)),
            "k_cache": _w((lambda *s: torch.randn(*s, dtype=torch.bfloat16) * 3.2)(B, Hkv, Sk, Dh)),
            "v_cache": _w((lambda *s: torch.randn(*s, dtype=torch.bfloat16) * 1.6)(B, Hkv, Sk, Dh)),
            "wq": _w((lambda *s: torch.randn(*s, dtype=torch.bfloat16) * 3.2)(D, Hq * Dh) * (D ** -0.5)),
            "wo": _w((lambda *s: torch.randn(*s, dtype=torch.bfloat16) * 1.6)(Hq * Dh, D) * ((Hq * Dh) ** -0.5)),
        }
    _A_in = _A_setup()

    def _B_setup():
        B, S, D, F = 2, 1, 1024, 3584
        return {
            "x": _w((lambda *s: torch.randn(*s, dtype=torch.bfloat16) * 0.05)(B, S, D)),
            "w_gate": _w((lambda *s: torch.randn(*s, dtype=torch.bfloat16) * 0.05)(D, F)),
            "w_up": _w((lambda *s: torch.randn(*s, dtype=torch.bfloat16) * 0.05)(D, F)),
            "w_down": _w((lambda *s: torch.randn(*s, dtype=torch.bfloat16) * 0.05)(F, D)),
        }
    _B_in = _B_setup()

    return {
        "A_x": _A_in["x"],
        "A_k_cache": _A_in["k_cache"],
        "A_v_cache": _A_in["v_cache"],
        "A_wq": _A_in["wq"],
        "A_wo": _A_in["wo"],
        "B_x": _B_in["x"],
        "B_w_gate": _B_in["w_gate"],
        "B_w_up": _B_in["w_up"],
        "B_w_down": _B_in["w_down"],
    }

def reference(A_x, A_k_cache, A_v_cache, A_wq, A_wo, B_x, B_w_gate, B_w_up, B_w_down):
    def _A_ref(x, k_cache, v_cache, wq, wo):
        B, Sq, D = x.shape
        Hq, Dh = 32, 128
        Hkv = k_cache.shape[1]
        rep = Hq // Hkv
        q = (lambda x, *d: x.permute(*d))((x @ wq).reshape(B, Sq, Hq, Dh), 0, 2, 1, 3)
        k = (lambda x, n, axis: torch.repeat_interleave(x, n, dim=axis))(k_cache, rep, axis=1)
        v = (lambda x, n, axis: torch.repeat_interleave(x, n, dim=axis))(v_cache, rep, axis=1)
        scores = torch.einsum("bhqd,bhkd->bhqk", q, k) * (Dh ** -0.5)
        p = _softmax(scores, axis=-1)
        o = torch.einsum("bhqk,bhkd->bhqd", p, v)
        return (lambda x, *d: x.permute(*d))(o, 0, 2, 1, 3).reshape(B, Sq, Hq * Dh) @ wo

    def _B_ref(x, w_gate, w_up, w_down):
        g = _silu(x @ w_gate)
        u = x @ w_up
        return (g * u) @ w_down

    x = A_x
    xn = _layernorm(x, axis=-1)
    return x + _A_ref(xn, A_k_cache, A_v_cache, A_wq, A_wo) + _B_ref(xn, B_w_gate, B_w_up, B_w_down)
```

```python
import re

class Emit:
    def __init__(self):
        self.lines = []
        self.vm = []
    def __call__(self, s):
        for ln in s.split("\n"):
            ln = ln.strip()
            if ln:
                self.lines.append(ln)
    def vmem(self, s, tag):
        self(s)
        self.vm.append(tag)
        assert len(self.vm) <= 63, "too many outstanding vmem ops: %d" % len(self.vm)
    def wait_vm(self, *tags, extra=""):
        idx = -1
        for i, t in enumerate(self.vm):
            if t in tags:
                idx = i
        if idx < 0:
            if extra:
                self("s_waitcnt " + extra)
            return
        n = len(self.vm) - idx - 1
        self(f"s_waitcnt vmcnt({n}) {extra}".strip())
        self.vm = self.vm[idx + 1:]
    def wait_all(self, extra=""):
        self(f"s_waitcnt vmcnt(0) {extra}".strip())
        self.vm = []

REG = re.compile(r"^(-?)(?:abs\()?([vas])(\d+|\[(\d+):(\d+)\])\)?$")
def regs(op):
    op = op.strip()
    if op in ("vcc", "exec"):
        return {(op, 0)}
    if op == "m0":
        return {("m0", 0)}
    m = REG.match(op)
    if not m:
        return set()
    k = m.group(2)
    if m.group(4) is not None:
        return {(k, i) for i in range(int(m.group(4)), int(m.group(5)) + 1)}
    return {(k, int(m.group(3)))}

TRANS = ("v_exp_f32", "v_log_f32", "v_rcp_f32", "v_rsq_f32", "v_sqrt_f32", "v_sin_f32", "v_cos_f32")

class Ins:
    def __init__(self, text):
        self.text = text
        t = text.split(";")[0].strip()
        self.label = t.endswith(":") or t.startswith(".")
        self.defs = set(); self.uses = set(); self.kind = "other"
        self.dpp = False; self.cuse = set(); self.store_data = set(); self.ab = set()
        if self.label or not t:
            self.kind = "label" if t else "empty"
            return
        parts = t.split(None, 1)
        mn = parts[0]
        self.mn = mn
        rest = parts[1] if len(parts) > 1 else ""
        ops = [o.strip() for o in rest.split(",")] if rest else []
        mods = ""
        if ops:
            lp = ops[-1].split(None, 1)
            ops[-1] = lp[0]
            mods = lp[1] if len(lp) > 1 else ""
        self.ops = ops; self.mods = mods
        R = [regs(o) for o in ops]
        def U(*i):
            s = set()
            for j in i:
                if j < len(R): s |= R[j]
            return s
        allr = list(range(len(ops)))
        if mn.startswith("v_mfma"):
            self.kind = "mfma"; self.defs = R[0]; self.ab = U(1, 2); self.cuse = U(3); self.uses = self.ab | self.cuse
        elif mn.startswith("v_"):
            self.kind = "valu"
            self.trans = mn.replace("_e32", "").replace("_e64", "") in TRANS
            self.dpp = ("_dpp" in mn) or ("row_" in mods) or ("quad_perm" in mods)
            if mn.startswith("v_cmp"):
                self.defs = R[0]; self.uses = U(*allr[1:])
            elif mn.startswith("v_permlane"):
                self.defs = U(0, 1); self.uses = U(0, 1); self.kind = "valu"; self.permlane = True
            elif mn.startswith("v_readfirstlane") or mn.startswith("v_readlane"):
                self.defs = R[0]; self.uses = U(*allr[1:]); self.readlane = True
            elif mn.startswith("v_add_co") or mn.startswith("v_addc_co") or mn.startswith("v_sub_co"):
                self.defs = U(0, 1); self.uses = U(*allr[2:])
            elif mn.startswith("v_fmac") or mn.startswith("v_dot2c") or mn.startswith("v_pk_fmac"):
                self.defs = R[0]; self.uses = U(*allr)
            else:
                self.defs = R[0]; self.uses = U(*allr[1:])
            if mn.startswith("v_cndmask") and len(ops) == 3:
                self.uses |= {("vcc", 0)}
        elif mn.startswith("ds_read") or mn.startswith("ds_bpermute") or mn.startswith("ds_swizzle"):
            self.kind = "ds"; self.defs = R[0]; self.uses = U(*allr[1:])
        elif mn.startswith("ds_"):
            self.kind = "ds"; self.uses = U(*allr)
        elif mn.startswith("buffer_load") or mn.startswith("global_load"):
            self.kind = "vmem"
            if " lds" in (" " + mods) or "_lds_" in mn:
                self.ldsdma = True; self.uses = U(*allr) | {("m0", 0)}
            else:
                self.defs = R[0]; self.uses = U(*allr[1:])
        elif mn.startswith("buffer_store") or mn.startswith("global_store"):
            self.kind = "vmem"; self.uses = U(*allr)
            if "x4" in mn or "x3" in mn:
                self.store_data = R[0] if mn.startswith("buffer") else R[1]
        elif mn.startswith("buffer_atomic") or mn.startswith("global_atomic"):
            self.kind = "vmem"; self.uses = U(*allr)
        elif mn.startswith("s_nop"):
            self.kind = "nop"; self.n = int(ops[0], 0) + 1
        elif mn.startswith("s_"):
            self.kind = "salu"
            if mn.startswith(("s_cmp", "s_waitcnt", "s_barrier", "s_cbranch", "s_branch", "s_endpgm", "s_sleep", "s_setprio")):
                self.uses = U(*allr)
            else:
                self.defs = R[0]; self.uses = U(*allr[1:])
                if "saveexec" in mn:
                    self.defs |= {("exec", 0)}; self.uses |= {("exec", 0)}
            if mn.startswith("s_cbranch") or mn.startswith("s_branch"):
                self.branch = True

def vg(rs):
    return {r for r in rs if r[0] in ("v", "a")}
def sg(rs):
    return {r for r in rs if r[0] in ("s", "vcc")}

def need(p, c):
    n = 0
    if p.kind == "valu":
        pv = vg(p.defs); ps = sg(p.defs)
        if c.kind == "mfma" and pv & vg(c.uses): n = max(n, 2)
        if c.kind == "valu":
            if c.dpp and pv & vg(c.uses | c.defs): n = max(n, 2)
            if getattr(c, "permlane", False) and pv & vg(c.uses): n = max(n, 2)
            if getattr(c, "readlane", False) and pv & vg(c.uses): n = max(n, 1)
            if getattr(p, "trans", False) and pv & vg(c.uses): n = max(n, 1)
            if ps & sg(c.uses): n = max(n, 4 if getattr(c, "readlane", False) else 2)
        if c.kind == "vmem" and ps & sg(c.uses): n = max(n, 5)
    if p.kind == "mfma":
        d = vg(p.defs)
        if c.kind == "mfma":
            if d & vg(c.ab): n = max(n, 8)
            if d & vg(c.cuse) and vg(c.cuse) != d: n = max(n, 6)
            if d & vg(c.defs) and vg(c.defs) != d: n = max(n, 8)
        elif c.kind in ("valu", "ds", "vmem"):
            if d & vg(c.uses | c.defs): n = max(n, 8)
        if c.kind == "valu" and vg(p.cuse) & vg(c.defs): n = max(n, 3)
    if p.kind == "salu" and ("m0", 0) in p.defs and getattr(c, "ldsdma", False): n = max(n, 1)
    if p.kind == "vmem" and p.store_data:
        if c.kind == "valu" and p.store_data & vg(c.defs): n = max(n, 2)
        elif c.kind in ("ds", "vmem", "mfma") and p.store_data & vg(c.defs): n = max(n, 1)
    return n

def fix_hazards(lines):
    out = []
    ninserted = 0
    for ln in lines:
        c = Ins(ln)
        if c.kind in ("label", "empty"):
            out.append(c)
            continue
        dist = 0
        req = 0
        for p in reversed(out):
            if p.kind in ("label", "empty"):
                continue
            if dist >= 10:
                break
            r = need(p, c) - dist
            if r > req: req = r
            dist += p.n if p.kind == "nop" else 1
        if req > 0:
            out.append(Ins(f"s_nop {req-1}"))
            ninserted += 1
        out.append(c)
    return [i.text for i in out], ninserted
```

```python
import sys, os
sys.path.insert(0, os.path.dirname(os.path.abspath(__file__)))
from asmlib import Emit, fix_hazards

NAME = "parallel_sum__gqa_block_cached__swiglu_ffn__decode"
CFG = dict(AHEAD=4, DBG=0, SPIN=30000, QR_AT=2, QR_CHK=5, H3_AT=4, QG_AT=7, STOP=0)
for a in sys.argv[2:]:
    k, v = a.split("="); CFG[k] = int(v, 0)
AHEAD = CFG["AHEAD"]; DBG = CFG["DBG"]

WS_QP, WS_QF, WS_GU, WS_O, WS_ML, WS_F = 0x10000, 0x90000, 0x100000, 0x200000, 0x400000, 0x480000
WS_DBG = 0x1000000
WS_NUM = 0x2000000 if DBG else 0x1000000
OOB = 0x7ff00000
MISC = 131072
L_R = MISC
L_Q = MISC + 12288
L_H = L_Q + 2176 + 128
L_ML = L_H + 4352
L_O2 = L_ML + 256
L_FR = L_O2 + 1024
LDS_BYTES = L_FR + 256
LDS_BYTES = (LDS_BYTES + 1023) // 1024 * 1024
sW, sGRP, sHI, sR5, sHALF = 3, 4, 5, 6, 7
SRD = dict(K=8, V=12, wq=16, wg=20, wu=24, wo=28, wd=32, ws=36, x=40, out=44)
sTAG, sRING, sKV, sSO = 48, 49, 50, 51
sWQ, sWG, sWO = 52, 53, 54
sT = 56
sSCALE = 64
sL2E = 66
sMASK = 68
sCNT = 69
sEX = 70
sQP, sQPR, sQF, sQFR, sGUP, sGUC, sOP, sMLP, sOC, sFP, sFC = 72, 73, 74, 75, 76, 77, 78, 79, 80, 81, 82
sSTAMP = 84
vTID, vLANE = 0, 1
vKD, vVD, vKR, vTR = 2, 6, 8, 12
vWQD, vWGD, vWOD = 20, 22, 24
vXN, vH, vO = 26, 30, 34
vTAG = 38
vQ = 40
vA = 56
vS, vP, vACC, vFR, vT = 64, 128, 160, 192, 224

e = Emit()
slow = []
nstamp = [0]
def stamp():
    if DBG:
        r = sSTAMP + 2 * nstamp[0]
        assert r + 1 <= 101
        e(f"s_memrealtime s[{r}:{r+1}]")
        nstamp[0] += 1
def srd(n): return f"s[{SRD[n]}:{SRD[n]+3}]"
def vr(a, n=1): return f"v{a}" if n == 1 else f"v[{a}:{a+n-1}]"
def ar(a, n=1): return f"a{a}" if n == 1 else f"a[{a}:{a+n-1}]"

TILES = ["wq", "wg", "wu"] + [f"K{i}" for i in range(8)] + [f"V{i}" for i in range(8)] + ["wd", "wo"]
issued = [0]
def issue_tile(idx):
    t = TILES[idx]; slot = idx % 4; tag = ("tile", idx)
    if t[0] in "KV":
        n = int(t[1]); rs = srd(t[0])
        for h in range(2):
            e(f"s_add_u32 m0, s{sRING}, {slot*8192 + h*4096}")
            e(f"s_add_u32 s{sSO}, s{sKV}, {n*32768 + h*4096}")
            for jj in range(4):
                v = vKD + jj if t[0] == "K" else vVD + (jj & 1)
                off = f" offset:{jj*1024}" if jj else ""
                e.vmem(f"buffer_load_dwordx4 v{v}, {rs}, s{sSO} offen{off} nt lds", tag)
    else:
        pitch, vb, sb = {"wq": (8192, vWQD, sWQ), "wg": (7168, vWGD, sWG), "wu": (7168, vWGD, sWG),
                         "wo": (2048, vWOD, sWO), "wd": (2048, vWOD, sWO)}[t]
        for p in range(4):
            e(f"s_add_u32 m0, s{sRING}, {slot*8192 + p*2048}")
            e(f"s_add_u32 s{sSO}, s{sb}, {8*p*pitch}")
            e.vmem(f"buffer_load_dwordx4 v{vb}, {srd(t)}, s{sSO} offen nt lds", tag)
            e.vmem(f"buffer_load_dwordx4 v{vb+1}, {srd(t)}, s{sSO} offen offset:1024 nt lds", tag)
def issue_next():
    if issued[0] < len(TILES):
        issue_tile(issued[0]); issued[0] += 1
def wait_tile(idx):
    e.wait_vm(("tile", idx))

def read_wfrags(idx, dst, agpr=False):
    slot = idx % 4
    for db in range(8):
        for u in range(2):
            r = dst + db*4 + u*2
            d = ar(r, 2) if agpr else vr(r, 2)
            e(f"ds_read_b64_tr_b16 {d}, v{vTR+db} offset:{slot*8192 + u*4096}")

gid = [0]
def check_tags(tagregs, reissue, t0, t1):
    def chk(out):
        rs = list(tagregs)
        if len(rs) == 1:
            out(f"v_cmp_ne_u32 vcc, s{sTAG}, v{rs[0]}")
            return
        for op, t in (("min", t0), ("max", t1)):
            r = list(rs)
            cur = None
            while r:
                if cur is None:
                    if len(r) >= 3:
                        out(f"v_{op}3_u32 v{t}, v{r[0]}, v{r[1]}, v{r[2]}"); r = r[3:]
                    else:
                        out(f"v_{op}_u32 v{t}, v{r[0]}, v{r[1]}"); r = r[2:]
                    cur = t
                elif len(r) >= 2:
                    out(f"v_{op}3_u32 v{t}, v{t}, v{r[0]}, v{r[1]}"); r = r[2:]
                else:
                    out(f"v_{op}_u32 v{t}, v{t}, v{r[0]}"); r = r[1:]
        out(f"v_xor_b32 v{t0}, s{sTAG}, v{t0}")
        out(f"v_xor_b32 v{t1}, s{sTAG}, v{t1}")
        out(f"v_or_b32 v{t0}, v{t0}, v{t1}")
        out(f"v_cmp_ne_u32 vcc, 0, v{t0}")
    g = gid[0]; gid[0] += 1
    chk(e)
    e(f"s_cbranch_vccnz SLOW{g}")
    e(f"BACK{g}:")
    s = []
    s.append(f"SLOW{g}:")
    s.append(f"s_mov_b32 s{sCNT}, {CFG['SPIN']}")
    s.append(f"LOOP{g}:")
    s += reissue
    s.append("s_waitcnt vmcnt(0)")
    chk(s.append)
    s.append(f"s_cbranch_vccz BACK{g}")
    s.append(f"s_sub_u32 s{sCNT}, s{sCNT}, 1")
    s.append(f"s_cmp_lg_u32 s{sCNT}, 0")
    s.append(f"s_cbranch_scc1 LOOP{g}")
    s.append(f"s_branch BACK{g}")
    slow.append(s)

def gather(loads, tag):
    for l in loads: e.vmem(l, tag)

def bf16_round_pair(dst_pk, a, b):
    e(f"v_cvt_pk_bf16_f32 v{dst_pk}, v{a}, v{b}")
def unpack(pk, lo, hi):
    e(f"v_and_b32 v{hi}, s{sMASK}, v{pk}")
    e(f"v_lshlrev_b32 v{lo}, 16, v{pk}")
def row_sum(reg, rors, op="add_f32"):
    for r in rors:
        e(f"v_{op}_dpp v{reg}, v{reg}, v{reg} row_ror:{r} row_mask:0xf bank_mask:0xf")
def swap_red(reg, tmp, which, op="add_f32"):
    e(f"v_mov_b32 v{tmp}, v{reg}")
    e(f"v_permlane{which}_swap_b32 v{reg}, v{tmp}")
    e(f"v_{op} v{reg}, v{reg}, v{tmp}")

e(f"s_cmp_ge_u32 s2, 256")
e(f"s_cbranch_scc1 DONE")
e("s_load_dwordx16 s[52:67], s[0:1], 0")
e("s_load_dwordx8 s[68:75], s[0:1], 64")
stamp()
e(f"v_and_b32 v{vLANE}, 63, v0")
e(f"v_lshrrev_b32 v{vT}, 6, v0")
e(f"v_readfirstlane_b32 s{sW}, v{vT}")
e(f"s_and_b32 s{sGRP}, s2, 7")
e(f"s_lshr_b32 s{sHI}, s2, 3")
e(f"s_and_b32 s{sHALF}, s{sHI}, 1")
e(f"s_lshr_b32 s{sR5}, s{sHI}, 1")
e(f"s_lshl_b32 s{sSO}, s{sGRP}, 4")
e(f"s_add_u32 s{sR5}, s{sR5}, s{sSO}")
N_, G_, B_ = vT, vT+1, vT+2
e(f"v_and_b32 v{N_}, 15, v{vLANE}")
e(f"v_lshrrev_b32 v{G_}, 4, v{vLANE}")
e(f"v_and_b32 v{B_}, 1, v{vLANE}")
e("s_waitcnt lgkmcnt(0)")
ptr = dict(x=52, K=54, V=56, wq=58, wo=60, wg=64, wu=66, wd=68, out=70, ws=74)
size = dict(x=4096, K=64 << 20, V=64 << 20, wq=8 << 20, wo=8 << 20, wg=7 << 20, wu=7 << 20, wd=7 << 20, out=4096, ws=WS_NUM)
for n in ("ws", "x", "wq", "wg", "wu", "K", "V", "wo", "wd", "out"):
    b = SRD[n]
    e(f"s_mov_b32 s{b}, s{ptr[n]}")
    e(f"s_mov_b32 s{b+1}, s{ptr[n]+1}")
    e(f"s_mov_b32 s{b+2}, {size[n]}")
    e(f"s_mov_b32 s{b+3}, 0x20000")
e(f"v_mov_b32 v{vT+3}, 0")
e.vmem(f"buffer_load_dword v{vTAG}, v{vT+3}, {srd('ws')}, 0 offen sc1", "epoch")
XS = vS
e(f"v_lshlrev_b32 v{vT+3}, 6, v{vLANE}")
for i in range(4):
    e.vmem(f"buffer_load_dwordx4 {vr(XS+4*i,4)}, v{vT+3}, {srd('x')}, 0 offen offset:{16*i}", "xs")
XF = vS + 16
e(f"s_lshl_b32 s{sT}, s{sGRP}, 8")
e(f"s_lshl_b32 s{sT+1}, s{sW}, 6")
e(f"s_add_u32 s{sT}, s{sT}, s{sT+1}")
e(f"v_lshlrev_b32 v{vT+4}, 11, v{B_}")
e(f"v_lshl_add_u32 v{vT+4}, v{G_}, 3, v{vT+4}")
e.vmem(f"buffer_load_dwordx2 {vr(XF,2)}, v{vT+4}, {srd('x')}, s{sT} offen", "xf")
e.vmem(f"buffer_load_dwordx2 {vr(XF+2,2)}, v{vT+4}, {srd('x')}, s{sT} offen offset:32", "xf")
e(f"s_lshl_b32 s{sRING}, s{sW}, 15")
e(f"s_lshl_b32 s{sKV}, s{sGRP}, 23")
e(f"s_lshl_b32 s{sT}, s{sHI}, 18")
e(f"s_add_u32 s{sKV}, s{sKV}, s{sT}")
e(f"s_lshl_b32 s{sT}, s{sW}, 13")
e(f"s_add_u32 s{sKV}, s{sKV}, s{sT}")
e(f"s_lshl_b32 s{sT}, s{sGRP}, 7")
e(f"s_lshl_b32 s{sT+1}, s{sW}, 5")
e(f"s_add_u32 s{sT}, s{sT}, s{sT+1}")
e(f"s_lshl_b32 s{sT+1}, s{sHI}, 8")
e(f"s_lshl_b32 s{sWQ}, s{sT}, 13")
e(f"s_add_u32 s{sWQ}, s{sWQ}, s{sT+1}")
e(f"s_mul_i32 s{sWG}, s{sT}, 7168")
e(f"s_add_u32 s{sWG}, s{sWG}, s{sT+1}")
e(f"s_cmp_ge_u32 s{sHI}, 28")
e(f"s_cselect_b32 s{sWG}, 0, s{sWG}")
e(f"s_cselect_b32 s{SRD['wg']+2}, 0, s{SRD['wg']+2}")
e(f"s_cselect_b32 s{SRD['wu']+2}, 0, s{SRD['wu']+2}")
e(f"s_lshl_b32 s{sWO}, s{sR5}, 16")
e(f"s_lshl_b32 s{sT}, s{sHALF}, 10")
e(f"s_add_u32 s{sWO}, s{sWO}, s{sT}")
e(f"s_lshl_b32 s{sT}, s{sW}, 8")
e(f"s_add_u32 s{sWO}, s{sWO}, s{sT}")
e(f"s_cmp_ge_u32 s{sR5}, 112")
e(f"s_cselect_b32 s{SRD['wd']+2}, 0, s{SRD['wd']+2}")
t = vT + 5
def wvoff(dst, pitch):
    for par in range(2):
        e(f"v_add_u32 v{t}, {4*par}, v{G_}")
        e(f"v_lshlrev_b32 v{t+1}, 1, v{t}")
        e(f"v_xor_b32 v{t+1}, v{t+1}, v{N_}")
        e(f"v_lshlrev_b32 v{t+1}, 4, v{t+1}")
        e(f"v_mul_u32_u24 v{t}, {pitch}, v{t}")
        e(f"v_add_u32 v{dst+par}, v{t}, v{t+1}")
        if par: e(f"v_subrev_u32 v{dst+par}, 1024, v{dst+par}")
wvoff(vWQD, 8192)
wvoff(vWGD, 7168)
issue_next(); issue_next(); issue_next()
for j in range(4):
    e(f"v_add_u32 v{t}, {4*j}, v{G_}")
    e(f"v_xor_b32 v{t}, v{t}, v{N_}")
    e(f"v_lshlrev_b32 v{t}, 4, v{t}")
    e(f"v_lshl_add_u32 v{vKD+j}, v{G_}, 8, v{t}")
for par in range(2):
    e(f"v_add_u32 v{t}, {4*par}, v{G_}")
    e(f"v_lshlrev_b32 v{t}, 1, v{t}")
    e(f"v_xor_b32 v{t}, v{t}, v{N_}")
    e(f"v_lshlrev_b32 v{t}, 4, v{t}")
    e(f"v_lshl_add_u32 v{vVD+par}, v{G_}, 8, v{t}")
for i in range(AHEAD - 3): issue_next()
wvoff(vWOD, 2048)
e(f"v_lshlrev_b32 v{t+1}, 8, v{N_}")
e(f"v_add_u32 v{t+1}, s{sRING}, v{t+1}")
for s in range(4):
    e(f"v_add_u32 v{t}, {4*s}, v{G_}")
    e(f"v_xor_b32 v{t}, v{t}, v{N_}")
    e(f"v_lshl_add_u32 v{vKR+s}, v{t}, 4, v{t+1}")
e(f"v_lshrrev_b32 v{t}, 2, v{vLANE}")
e(f"v_and_b32 v{t+1}, 7, v{t}")
e(f"v_lshlrev_b32 v{t}, 8, v{t}")
e(f"v_add_u32 v{t}, s{sRING}, v{t}")
e(f"v_and_b32 v{t+2}, 3, v{vLANE}")
e(f"v_lshlrev_b32 v{t+2}, 3, v{t+2}")
e(f"v_add_u32 v{t}, v{t}, v{t+2}")
for db in range(8):
    e(f"v_xor_b32 v{t+2}, {db}, v{t+1}")
    e(f"v_lshl_add_u32 v{vTR+db}, v{t+2}, 5, v{t}")
e(f"s_lshl_b32 s{sT}, s{sHI}, 14"); e(f"s_lshl_b32 s{sT+1}, s{sGRP}, 10")
e(f"s_add_u32 s{sT}, s{sT}, s{sT+1}"); e(f"s_add_u32 s{sQP}, s{sT}, {WS_QP}")
e(f"s_lshr_b32 s{sT}, s{sGRP}, 2"); e(f"s_and_b32 s{sT+1}, s{sGRP}, 3")
e(f"s_lshl_b32 s{sT+2}, s{sT+1}, 2"); e(f"s_add_u32 s{sT+2}, s{sT+2}, s{sW}")
e(f"s_lshl_b32 s{sT+3}, s{sHI}, 14"); e(f"s_lshl_b32 s{sT+4}, s{sT}, 13")
e(f"s_add_u32 s{sT+3}, s{sT+3}, s{sT+4}"); e(f"s_lshl_b32 s{sT+4}, s{sT+2}, 6")
e(f"s_add_u32 s{sT+3}, s{sT+3}, s{sT+4}"); e(f"s_add_u32 s{sQPR}, s{sT+3}, {WS_QP}")
e(f"s_lshl_b32 s{sT+3}, s{sT}, 14"); e(f"s_lshl_b32 s{sT+4}, s{sHI}, 9")
e(f"s_add_u32 s{sT+3}, s{sT+3}, s{sT+4}"); e(f"s_lshl_b32 s{sT+4}, s{sT+2}, 5")
e(f"s_add_u32 s{sT+3}, s{sT+3}, s{sT+4}"); e(f"s_add_u32 s{sQF}, s{sT+3}, {WS_QF}")
e(f"s_lshl_b32 s{sT+3}, s{sGRP}, 12"); e(f"s_add_u32 s{sQFR}, s{sT+3}, {WS_QF}")
e(f"s_lshl_b32 s{sT+3}, s{sHI}, 15"); e(f"s_lshl_b32 s{sT+4}, s{sGRP}, 9"); e(f"s_add_u32 s{sT+3}, s{sT+3}, s{sT+4}")
e(f"s_lshr_b32 s{sT+4}, s{sW}, 1"); e(f"s_lshl_b32 s{sT+4}, s{sT+4}, 12"); e(f"s_add_u32 s{sT+3}, s{sT+3}, s{sT+4}")
e(f"s_and_b32 s{sT+4}, s{sW}, 1"); e(f"s_lshl_b32 s{sT+4}, s{sT+4}, 8"); e(f"s_add_u32 s{sT+3}, s{sT+3}, s{sT+4}")
e(f"s_add_u32 s{sGUP}, s{sT+3}, {WS_GU}")
e(f"s_lshl_b32 s{sT+3}, s{sR5}, 13"); e(f"s_add_u32 s{sGUC}, s{sT+3}, {WS_GU}")
e(f"s_lshl_b32 s{sT+3}, s2, 0");
e(f"s_lshl_b32 s{sT+3}, s{sGRP}, 5"); e(f"s_add_u32 s{sT+3}, s{sT+3}, s{sHI}"); e(f"s_lshl_b32 s{sT+3}, s{sT+3}, 13")
e(f"s_add_u32 s{sOP}, s{sT+3}, {WS_O}")
e(f"s_lshl_b32 s{sT+3}, s{sGRP}, 12"); e(f"s_lshl_b32 s{sT+4}, s{sHI}, 4"); e(f"s_add_u32 s{sT+3}, s{sT+3}, s{sT+4}")
e(f"s_add_u32 s{sMLP}, s{sT+3}, {WS_ML}")
e(f"s_mov_b32 s{sSCALE}, 0x3db504f3"); e(f"s_mov_b32 s{sSCALE+1}, 0x3db504f3")
e(f"s_mov_b32 s{sL2E}, 0x3fb8aa3b"); e(f"s_mov_b32 s{sL2E+1}, 0x3fb8aa3b")
e(f"s_mov_b32 s{sMASK}, 0xffff0000")

e.wait_vm("epoch")
e(f"v_readfirstlane_b32 s{sTAG}, v{vTAG}")
e(f"s_mul_i32 s{sTAG}, s{sTAG}, 1664525")
e(f"s_add_u32 s{sTAG}, s{sTAG}, 1013904223")
e(f"v_mov_b32 v{vTAG}, s{sTAG}")
e.wait_vm("xs")
X = vS + 24
for i in range(16):
    unpack(XS + i, X + 2*i, X + 2*i + 1)
acc = vT + 4
e(f"v_pk_add_f32 {vr(acc,2)}, {vr(X,2)}, {vr(X+2,2)}")
for i in range(2, 16):
    e(f"v_pk_add_f32 {vr(acc,2)}, {vr(acc,2)}, {vr(X+2*i,2)}")
e(f"v_add_f32 v{acc}, v{acc}, v{acc+1}")
row_sum(acc, (8, 4, 2, 1))
swap_red(acc, acc+1, 16)
e(f"v_mul_f32 v{acc}, 0x3a800000, v{acc}")
e(f"v_mov_b32 v{acc+1}, v{acc}")
va = acc + 2
for i in range(16):
    e(f"v_pk_add_f32 {vr(X+2*i,2)}, {vr(X+2*i,2)}, {vr(acc,2)} neg_lo:[0,1] neg_hi:[0,1]")
e(f"v_pk_mul_f32 {vr(va,2)}, {vr(X,2)}, {vr(X,2)}")
for i in range(1, 16):
    e(f"v_pk_fma_f32 {vr(va,2)}, {vr(X+2*i,2)}, {vr(X+2*i,2)}, {vr(va,2)}")
e(f"v_add_f32 v{va}, v{va}, v{va+1}")
row_sum(va, (8, 4, 2, 1))
swap_red(va, va+1, 16)
e(f"v_mul_f32 v{va}, 0x3a800000, v{va}")
bf16_round_pair(acc, acc, va)
unpack(acc, acc+1, va)
e(f"v_add_f32 v{va}, 0x3727c5ac, v{va}")
bf16_round_pair(va, va, va)
e(f"v_and_b32 v{va}, s{sMASK}, v{va}")
e(f"v_sqrt_f32 v{va}, v{va}")
bf16_round_pair(va, va, va)
e(f"v_and_b32 v{va}, s{sMASK}, v{va}")
e(f"v_readlane_b32 s{sT}, v{acc+1}, 0")
e(f"v_readlane_b32 s{sT+1}, v{acc+1}, 32")
e(f"v_readlane_b32 s{sT+2}, v{va}, 0")
e(f"v_readlane_b32 s{sT+3}, v{va}, 32")
e(f"v_cmp_eq_u32 vcc, 1, v{B_}")
e(f"v_mov_b32 v{acc}, s{sT}"); e(f"v_mov_b32 v{acc+1}, s{sT+1}")
e(f"v_cndmask_b32 v{acc}, v{acc}, v{acc+1}, vcc")
e(f"v_mov_b32 v{va}, s{sT+2}"); e(f"v_mov_b32 v{va+1}, s{sT+3}")
e(f"v_cndmask_b32 v{va}, v{va}, v{va+1}, vcc")
e(f"v_rcp_f32 v{va+1}, v{va}")
e.wait_vm("xf")
Y = X
for i in range(4):
    unpack(XF + i, Y + 2*i, Y + 2*i + 1)
for i in range(8):
    e(f"v_sub_f32 v{Y+i}, v{Y+i}, v{acc}")
for i in range(4):
    bf16_round_pair(XF + i, Y + 2*i, Y + 2*i + 1)
    unpack(XF + i, Y + 2*i, Y + 2*i + 1)
for i in range(8):
    e(f"v_mul_f32 v{Y+8+i}, v{Y+i}, v{va+1}")
    e(f"v_fma_f32 v{Y+i}, -v{Y+8+i}, v{va}, v{Y+i}")
    e(f"v_fma_f32 v{Y+i}, v{Y+i}, v{va+1}, v{Y+8+i}")
for i in range(4):
    bf16_round_pair(vXN + i, Y + 2*i, Y + 2*i + 1)
aRW, aT8, aLN16, aT16, aN272 = vA, vA+1, vA+2, vA+3, vA+4
e(f"s_lshl_b32 s{sT}, s{sW}, 10"); e(f"s_add_u32 s{sT}, s{sT}, {L_R}")
e(f"v_lshlrev_b32 v{aRW}, 9, v{B_}"); e(f"v_lshl_add_u32 v{aRW}, v{G_}, 4, v{aRW}"); e(f"v_add_u32 v{aRW}, s{sT}, v{aRW}")
e(f"v_lshlrev_b32 v{aT16}, 4, v0")
e(f"v_mul_u32_u24 v{aN272}, 272, v{N_}"); e(f"v_lshl_add_u32 v{aN272}, v{G_}, 4, v{aN272}")
stamp()

def proj_tile(idx, mat):
    wait_tile(idx)
    read_wfrags(idx, vFR)
    e("s_waitcnt lgkmcnt(0)")
    return
def proj_mfma(mat, bfrag):
    for db in range(8):
        e(f"v_mfma_f32_16x16x32_bf16 {vr(vACC+4*db,4)}, {vr(vFR+4*db,4)}, {vr(bfrag,4)}, 0")
def proj_write(mat):
    e(f"s_mov_b64 s[{sEX}:{sEX+1}], exec")
    e("s_mov_b32 exec_lo, 0x00030003"); e("s_mov_b32 exec_hi, 0x00030003")
    for db in range(8):
        e(f"ds_write_b128 v{aRW}, {vr(vACC+4*db,4)} offset:{mat*4096 + db*64}")
    e(f"s_mov_b64 exec, s[{sEX}:{sEX+1}]")

proj_tile(0, 0)
issue_next()
proj_mfma(0, vXN)
proj_write(0)
e("s_waitcnt lgkmcnt(0)")
e("s_barrier")
g0 = vT + 8
e(f"v_lshlrev_b32 v{g0+7}, 2, v0")
for w in range(4):
    e(f"ds_read_b32 v{g0+w}, v{g0+7} offset:{L_R - MISC + w*1024 + 0}" if False else f"ds_read_b32 v{g0+w}, v{aT8} offset:{w*1024}") if False else None
e(f"v_add_u32 v{g0+7}, {L_R}, v{g0+7}")
for w in range(4):
    e(f"ds_read_b32 v{g0+w}, v{g0+7} offset:{w*1024}")
e(f"v_and_b32 v{g0+6}, 127, v0"); e(f"v_lshlrev_b32 v{g0+6}, 3, v{g0+6}")
e(f"v_lshrrev_b32 v{g0+5}, 7, v0"); e(f"v_lshl_add_u32 v{g0+6}, v{g0+5}, 13, v{g0+6}")
e("s_waitcnt lgkmcnt(0)")
e(f"v_add_f32 v{g0}, v{g0}, v{g0+1}"); e(f"v_add_f32 v{g0+2}, v{g0+2}, v{g0+3}")
e(f"v_add_f32 v{g0}, v{g0}, v{g0+2}"); e(f"v_mov_b32 v{g0+1}, v{vTAG}")
e.vmem(f"buffer_store_dwordx2 {vr(g0,2)}, v{g0+6}, {srd('ws')}, s{sQP} offen sc0 sc1", "st")
stamp()
proj_tile(1, 1)
issue_next()
proj_mfma(1, vXN)
proj_write(1)
proj_tile(2, 2)
QR = vS
aQR = vA + 5
e(f"v_and_b32 v{aQR}, 31, v{vLANE}")
e(f"v_lshrrev_b32 v{g0}, 2, v{aQR}"); e(f"v_and_b32 v{aQR}, 3, v{aQR}")
e(f"v_lshlrev_b32 v{aQR}, 4, v{aQR}"); e(f"v_lshl_add_u32 v{aQR}, v{g0}, 10, v{aQR}")
qr_loads = [f"buffer_load_dwordx4 {vr(QR,4)}, v{aQR}, {srd('ws')}, s{sQPR} offen sc1"]
gather(qr_loads, "qr")
issue_next()
proj_mfma(2, vXN)
proj_write(2)
e("s_waitcnt lgkmcnt(0)")
e("s_barrier")
e(f"s_lshr_b32 s{sT}, s{sW}, 1"); e(f"s_lshl_b32 s{sT}, s{sT}, 12"); e(f"s_and_b32 s{sT+1}, s{sW}, 1")
e(f"s_lshl_b32 s{sT+1}, s{sT+1}, 9"); e(f"s_add_u32 s{sT}, s{sT}, s{sT+1}"); e(f"s_add_u32 s{sT}, s{sT}, {L_R + 4096}")
e(f"v_lshlrev_b32 v{g0+12}, 3, v{vLANE}"); e(f"v_add_u32 v{g0+12}, s{sT}, v{g0+12}")
for w in range(4):
    e(f"ds_read_b64 {vr(g0+2*w,2)}, v{g0+12} offset:{w*1024}")
e(f"v_lshlrev_b32 v{g0+13}, 4, v{N_}"); e(f"v_lshl_add_u32 v{g0+13}, v{G_}, 13, v{g0+13}")
e("s_waitcnt lgkmcnt(0)")
e(f"v_pk_add_f32 {vr(g0,2)}, {vr(g0,2)}, {vr(g0+2,2)}"); e(f"v_pk_add_f32 {vr(g0+4,2)}, {vr(g0+4,2)}, {vr(g0+6,2)}")
e(f"v_pk_add_f32 {vr(g0,2)}, {vr(g0,2)}, {vr(g0+4,2)}")
e(f"v_mov_b32 v{g0+2}, v{g0+1}"); e(f"v_mov_b32 v{g0+1}, v{vTAG}"); e(f"v_mov_b32 v{g0+3}, v{vTAG}")
e.vmem(f"buffer_store_dwordx4 {vr(g0,4)}, v{g0+13}, {srd('ws')}, s{sGUP} offen sc0 sc1", "st")
stamp()

def k_tile(idx):
    n = idx - 3; slot = idx % 4
    wait_tile(idx)
    for u in range(2):
        for s in range(4):
            e(f"ds_read_b128 {ar(n*32 + u*16 + s*4, 4)}, v{vKR+s} offset:{slot*8192 + u*4096}")
    e("s_waitcnt lgkmcnt(0)")
GU = vS + 8
QG = vS + 16
gu_loads = [f"buffer_load_dwordx4 {vr(GU+4*m,4)}, v{aT16}, {srd('ws')}, s{sGUC} offen offset:{0}" .replace("offset:0", "") + (f" offset:{4095}" if False else "") for m in range(1)]
sGUC2 = 83
e(f"s_add_u32 s{sGUC2}, s{sGUC}, 4096")
gu_loads = [f"buffer_load_dwordx4 {vr(GU,4)}, v{aT16}, {srd('ws')}, s{sGUC} offen sc1",
            f"buffer_load_dwordx4 {vr(GU+4,4)}, v{aT16}, {srd('ws')}, s{sGUC2} offen sc1"]
qg_loads = [f"buffer_load_dwordx4 {vr(QG,4)}, v{aT16}, {srd('ws')}, s{sQFR} offen sc1"]
for idx in range(3, 11):
    k_tile(idx)
    if idx == CFG["H3_AT"]: gather(gu_loads, "gu")
    if idx == CFG["QG_AT"]: gather(qg_loads, "qg")
    issue_next()
    if idx == CFG["QR_CHK"]:
        e.wait_vm("qr")
        check_tags([QR+1, QR+3], qr_loads, g0, g0+1)
        for r in (QR, QR+2):
            row_sum(r, (4, 8))
            swap_red(r, g0, 16)
        e(f"v_cvt_pk_bf16_f32 v{g0}, v{QR}, v{QR+2}")
        e(f"v_mov_b32 v{g0+1}, v{vTAG}")
        e(f"v_lshlrev_b32 v{g0+2}, 3, v{vLANE}"); e(f"v_mov_b32 v{g0+3}, {OOB}")
        e(f"v_cmp_gt_u32 vcc, 4, v{vLANE}")
        e(f"v_cndmask_b32 v{g0+2}, v{g0+3}, v{g0+2}, vcc")
        e.vmem(f"buffer_store_dwordx2 {vr(g0,2)}, v{g0+2}, {srd('ws')}, s{sQF} offen sc0 sc1", "st")
        stamp()
stamp()
e.wait_vm("gu", "qg")
check_tags([GU+1, GU+3, GU+5, GU+7, QG+1, QG+3], gu_loads + qg_loads, g0, g0+1)
e(f"v_lshrrev_b32 v{g0}, 5, v0"); e(f"v_mul_u32_u24 v{g0}, 272, v{g0}"); e(f"v_and_b32 v{g0+1}, 31, v0")
e(f"v_lshl_add_u32 v{g0}, v{g0+1}, 3, v{g0}"); e(f"v_add_u32 v{g0}, {L_Q}, v{g0}")
e(f"v_mov_b32 v{QG+1}, v{QG+2}")
e(f"ds_write_b64 v{g0}, {vr(QG,2)}")
e(f"v_lshrrev_b32 v{g0+2}, 4, v0"); e(f"v_mul_u32_u24 v{g0+2}, 272, v{g0+2}")
e(f"v_lshl_add_u32 v{g0+2}, v{N_}, 3, v{g0+2}"); e(f"v_add_u32 v{g0+2}, {L_H}, v{g0+2}")
for m in range(2):
    e(f"v_mov_b32 v{GU+4*m+1}, v{GU+4*m+2}")
    e(f"ds_write_b64 v{g0+2}, {vr(GU+4*m,2)} offset:{128*m}")
e("s_waitcnt lgkmcnt(0)")
e("s_barrier")
e(f"v_and_b32 v{g0}, 7, v{N_}"); e(f"v_mul_u32_u24 v{g0}, 272, v{g0}"); e(f"v_lshl_add_u32 v{g0}, v{G_}, 4, v{g0}")
e(f"v_add_u32 v{g0}, {L_Q}, v{g0}")
for s in range(4):
    e(f"ds_read_b128 {vr(vQ+4*s,4)}, v{g0} offset:{s*64}")
HG = vFR
e(f"v_add_u32 v{g0+1}, {L_H}, v{aN272}")
for m in range(2):
    for u in range(2):
        e(f"ds_read_b128 {vr(HG + 8*m + 4*u, 4)}, v{g0+1} offset:{m*128 + u*64}")
e("s_waitcnt lgkmcnt(0)")
for s in range(4):
    for T in range(8):
        for u in range(2):
            d = vr(vS + T*8 + u*4, 4)
            e(f"v_mfma_f32_16x16x32_bf16 {d}, {ar(T*32 + u*16 + s*4, 4)}, {vr(vQ+4*s,4)}, {'0' if s == 0 else d}")
for i in range(16):
    row_sum(HG + i, (2, 4, 8))
for i in range(8):
    bf16_round_pair(g0 + i, HG + 2*i, HG + 2*i + 1)
    unpack(g0 + i, HG + 2*i, HG + 2*i + 1)
e(f"s_mov_b32 s{sT}, 0xbfb8aa3b")
for i in range(8):
    e(f"v_mul_f32 v{g0+i}, s{sT}, v{HG+i}")
for i in range(8):
    e(f"v_exp_f32 v{g0+i}, v{g0+i}")
for i in range(8):
    e(f"v_add_f32 v{g0+i}, 1.0, v{g0+i}")
for i in range(8):
    e(f"v_rcp_f32 v{g0+i}, v{g0+i}")
for i in range(8):
    e(f"v_mul_f32 v{HG+i}, v{HG+i}, v{g0+i}")
for i in range(4):
    bf16_round_pair(g0 + i, HG + 2*i, HG + 2*i + 1)
    unpack(g0 + i, HG + 2*i, HG + 2*i + 1)
for i in range(8):
    e(f"v_mul_f32 v{HG+i}, v{HG+i}, v{HG+8+i}")
for i in range(4):
    bf16_round_pair(vH + i, HG + 2*i, HG + 2*i + 1)
stamp()
tp = vFR
for i in range(32):
    bf16_round_pair(tp + i, vS + 2*i, vS + 2*i + 1)
for i in range(32):
    unpack(tp + i, vS + 2*i, vS + 2*i + 1)
for i in range(32):
    e(f"v_pk_mul_f32 {vr(vS+2*i,2)}, {vr(vS+2*i,2)}, s[{sSCALE}:{sSCALE+1}]")
for i in range(32):
    bf16_round_pair(tp + i, vS + 2*i, vS + 2*i + 1)
for i in range(32):
    unpack(tp + i, vS + 2*i, vS + 2*i + 1)
vM, vL = vA + 6, vA + 7
for c in range(4):
    e(f"v_max3_f32 v{g0+c}, v{vS+16*c}, v{vS+16*c+1}, v{vS+16*c+2}")
for i in range(6):
    for c in range(4):
        e(f"v_max3_f32 v{g0+c}, v{g0+c}, v{vS+16*c+3+2*i}, v{vS+16*c+4+2*i}")
for c in range(4):
    e(f"v_max_f32 v{g0+c}, v{g0+c}, v{vS+16*c+15}")
e(f"v_max3_f32 v{g0}, v{g0}, v{g0+1}, v{g0+2}"); e(f"v_max_f32 v{vM}, v{g0}, v{g0+3}")
swap_red(vM, g0, 32, "max_f32"); swap_red(vM, g0, 16, "max_f32")
e(f"v_mul_f32 v{vM}, s{sL2E}, v{vM}")
e(f"v_sub_f32 v{g0}, 0, v{vM}"); e(f"v_mov_b32 v{g0+1}, v{g0}")
for i in range(32):
    e(f"v_pk_fma_f32 {vr(vS+2*i,2)}, {vr(vS+2*i,2)}, s[{sL2E}:{sL2E+1}], {vr(g0,2)}")
for i in range(64):
    e(f"v_exp_f32 v{vS+i}, v{vS+i}")
for i in range(32):
    bf16_round_pair(vP + i, vS + 2*i, vS + 2*i + 1)
for c in range(4):
    e(f"v_pk_add_f32 {vr(g0+2*c,2)}, {vr(vS+16*c,2)}, {vr(vS+16*c+2,2)}")
for i in range(2, 8):
    for c in range(4):
        e(f"v_pk_add_f32 {vr(g0+2*c,2)}, {vr(g0+2*c,2)}, {vr(vS+16*c+2*i,2)}")
e(f"v_pk_add_f32 {vr(g0,2)}, {vr(g0,2)}, {vr(g0+2,2)}"); e(f"v_pk_add_f32 {vr(g0+4,2)}, {vr(g0+4,2)}, {vr(g0+6,2)}")
e(f"v_pk_add_f32 {vr(g0,2)}, {vr(g0,2)}, {vr(g0+4,2)}"); e(f"v_add_f32 v{vL}, v{g0}, v{g0+1}")
swap_red(vL, g0, 32); swap_red(vL, g0, 16)
stamp()
for idx in range(11, 19):
    T = idx - 11; ab = (T & 1) * 32
    wait_tile(idx)
    read_wfrags(idx, ab, agpr=True)
    e("s_waitcnt lgkmcnt(0)")
    issue_next()
    for db in range(8):
        d = vr(vACC + 4*db, 4)
        e(f"v_mfma_f32_16x16x32_bf16 {d}, {ar(ab + 4*db, 4)}, {vr(vP + 4*T, 4)}, {'0' if T == 0 else d}")
stamp()
OSLOT = (18 % 4) * 8192
e(f"v_and_b32 v{g0}, 7, v{N_}"); e(f"v_mul_u32_u24 v{g0}, 528, v{g0}"); e(f"v_lshl_add_u32 v{g0}, v{G_}, 4, v{g0}")
e(f"v_add_u32 v{g0}, s{sRING}, v{g0}")
e(f"s_lshl_b32 s{sT}, s{sW}, 6"); e(f"s_add_u32 s{sT}, s{sT}, {L_ML}")
e(f"v_lshlrev_b32 v{g0+1}, 3, v{N_}"); e(f"v_add_u32 v{g0+1}, s{sT}, v{g0+1}")
e(f"s_mov_b64 s[{sEX}:{sEX+1}], exec")
e("s_mov_b32 exec_lo, 0x00ff00ff"); e("s_mov_b32 exec_hi, 0x00ff00ff")
for db in range(8):
    e(f"ds_write_b128 v{g0}, {vr(vACC+4*db,4)} offset:{OSLOT + db*64}")
e("s_mov_b32 exec_lo, 0x000000ff"); e("s_mov_b32 exec_hi, 0")
e(f"ds_write_b64 v{g0+1}, {vr(vM,2)}")
e(f"s_mov_b64 exec, s[{sEX}:{sEX+1}]")
hd = g0 + 2
e(f"v_lshrrev_b32 v{hd}, 5, v{vLANE}"); e(f"s_lshl_b32 s{sT}, s{sW}, 1"); e(f"v_add_u32 v{hd}, s{sT}, v{hd}")
e(f"v_and_b32 v{g0+3}, 3, v{vLANE}"); e(f"v_lshlrev_b32 v{g0+3}, 4, v{g0+3}")
e(f"v_bfe_u32 v{g0+4}, v{vLANE}, 2, 1"); e(f"v_lshl_add_u32 v{g0+3}, v{g0+4}, 3, v{g0+3}")
e(f"v_bfe_u32 v{g0+4}, v{vLANE}, 3, 2"); e(f"v_lshl_add_u32 v{g0+3}, v{g0+4}, 6, v{g0+3}")
e(f"v_mul_u32_u24 v{g0+4}, 528, v{hd}"); e(f"v_add_u32 v{g0+3}, v{g0+3}, v{g0+4}")
e(f"v_lshlrev_b32 v{g0+4}, 3, v{hd}"); e(f"v_add_u32 v{g0+4}, {L_ML}, v{g0+4}")
e(f"v_and_b32 v{g0+5}, 31, v{vLANE}"); e(f"v_lshlrev_b32 v{g0+5}, 4, v{g0+5}")
e(f"v_lshl_add_u32 v{g0+5}, v{hd}, 10, v{g0+5}")
e(f"v_lshlrev_b32 v{g0+6}, 9, v{hd}"); e(f"v_mov_b32 v{g0+7}, {OOB}")
e(f"v_and_b32 v{g0+8}, 31, v{vLANE}"); e(f"v_cmp_eq_u32 vcc, 0, v{g0+8}")
e(f"v_cndmask_b32 v{g0+6}, v{g0+7}, v{g0+6}, vcc")
e("s_waitcnt lgkmcnt(0)")
e("s_barrier")
MO = vS
for w in range(4):
    e(f"ds_read_b64 {vr(MO+16+2*w,2)}, v{g0+4} offset:{w*64}")
e(f"v_add_u32 v{g0+7}, 0x8000, v{g0+3}"); e(f"v_add_u32 v{g0+8}, 0x10000, v{g0+3}"); e(f"v_add_u32 v{g0+9}, 0x18000, v{g0+3}")
for w, a in enumerate((g0+3, g0+7, g0+8, g0+9)):
    for hf in range(2):
        e(f"ds_read_b64 {vr(MO+4*w+2*hf,2)}, v{a} offset:{OSLOT + hf*256}")
e("s_waitcnt lgkmcnt(8)")
mm = MO + 24
e(f"v_max3_f32 v{mm}, v{MO+16}, v{MO+18}, v{MO+20}"); e(f"v_max_f32 v{mm}, v{mm}, v{MO+22}")
for w in range(4):
    e(f"v_sub_f32 v{MO+16+2*w}, v{MO+16+2*w}, v{mm}")
for w in range(4):
    e(f"v_exp_f32 v{MO+16+2*w}, v{MO+16+2*w}")
e(f"v_mul_f32 v{mm+2}, v{MO+16}, v{MO+17}")
for w in range(1, 4):
    e(f"v_fma_f32 v{mm+2}, v{MO+16+2*w}, v{MO+17+2*w}, v{mm+2}")
e(f"v_mov_b32 v{mm+1}, v{vTAG}"); e(f"v_mov_b32 v{mm+3}, v{vTAG}")
e("s_waitcnt lgkmcnt(0)")
og = MO + 28
for hf in range(2):
    for k in range(2):
        d = og + 4*hf + 2*k
        e(f"v_mul_f32 v{d}, v{MO+16}, v{MO+2*hf+k}")
        for w in range(1, 4):
            e(f"v_fma_f32 v{d}, v{MO+16+2*w}, v{MO+4*w+2*hf+k}, v{d}")
        e(f"v_mov_b32 v{d+1}, v{vTAG}")
for hf in range(2):
    off = f" offset:{512*hf}" if hf else ""
    e.vmem(f"buffer_store_dwordx4 {vr(og+4*hf,4)}, v{g0+5}, {srd('ws')}, s{sOP} offen{off} sc0 sc1", "st")
e.vmem(f"buffer_store_dwordx4 {vr(mm,4)}, v{g0+6}, {srd('ws')}, s{sMLP} offen sc0 sc1", "st")
stamp()
SUB = g0 + 10
e(f"v_lshrrev_b32 v{SUB}, 1, v{N_}")
e(f"s_lshr_b32 s{sT}, s{sR5}, 5")
e(f"s_lshr_b32 s{sT+1}, s{sR5}, 2"); e(f"s_and_b32 s{sT+1}, s{sT+1}, 7")
e(f"s_and_b32 s{sT+2}, s{sR5}, 3")
e(f"s_lshl_b32 s{sT+3}, s{sT}, 18"); e(f"s_lshl_b32 s{sT+4}, s{sW}, 16"); e(f"s_add_u32 s{sT+3}, s{sT+3}, s{sT+4}")
e(f"s_lshl_b32 s{sT+4}, s{sT+1}, 10"); e(f"s_add_u32 s{sT+3}, s{sT+3}, s{sT+4}")
e(f"s_lshl_b32 s{sT+4}, s{sT+2}, 8"); e(f"s_add_u32 s{sT+3}, s{sT+3}, s{sT+4}"); e(f"s_add_u32 s{sOC}, s{sT+3}, {WS_O}")
aOG, aML1, aML2 = g0 + 11, g0 + 12, g0 + 13
e(f"v_lshlrev_b32 v{aOG}, 20, v{B_}"); e(f"v_lshl_add_u32 v{aOG}, v{SUB}, 13, v{aOG}"); e(f"v_lshl_add_u32 v{aOG}, v{G_}, 4, v{aOG}")
e(f"s_lshl_b32 s{sT+3}, s{sT}, 12"); e(f"s_lshl_b32 s{sT+4}, s{sT+1}, 9"); e(f"s_add_u32 s{sT+3}, s{sT+3}, s{sT+4}")
e(f"s_add_u32 s{sT+5}, s{sT+3}, {WS_ML}")
e(f"s_lshl_b32 s{sT+4}, s{sW}, 7"); e(f"s_add_u32 s{sT+6}, s{sT+5}, s{sT+4}")
e(f"v_lshlrev_b32 v{aML2}, 14, v{B_}"); e(f"v_lshl_add_u32 v{aML2}, v{SUB}, 4, v{aML2}")
e(f"v_lshl_add_u32 v{aML1}, v{G_}, 7, v{aML2}")
OG = vS + 40
o_loads = [f"buffer_load_dwordx4 {vr(OG+4*q,4)}, v{aOG}, {srd('ws')}, s{sOC} offen offset:{64*q} sc1".replace(" offset:0 ", " ") for q in range(4)]
o_loads += [f"buffer_load_dwordx4 {vr(OG+16,4)}, v{aML1}, {srd('ws')}, s{sT+5} offen sc1",
            f"buffer_load_dwordx4 {vr(OG+20,4)}, v{aML2}, {srd('ws')}, s{sT+6} offen sc1"]
gather(o_loads, "og")
def publish_F(mat):
    F = vFR + 8
    e(f"s_mov_b64 s[{sEX}:{sEX+1}], exec")
    e("s_mov_b32 exec_lo, 0x00030003"); e("s_mov_b32 exec_hi, 0x00030003")
    for db in range(8):
        for r in range(4):
            e(f"v_mov_b32 v{F + 2*r}, v{vACC + 4*db + r}")
        if db < 7: e("s_lshl_b64 exec, exec, 2")
    e(f"s_mov_b64 exec, s[{sEX}:{sEX+1}]")
    for r in range(4): e(f"v_mov_b32 v{F + 2*r + 1}, v{vTAG}")
    e.vmem(f"buffer_store_dwordx4 {vr(F,4)}, v{aF}, {srd('ws')}, s{sFP} offen sc0 sc1", "st")
    e.vmem(f"buffer_store_dwordx4 {vr(F+4,4)}, v{aF}, {srd('ws')}, s{sFP} offen offset:16 sc0 sc1", "st")
aF = vA + 5
e(f"v_lshlrev_b32 v{aF}, 20, v{B_}"); e(f"v_lshl_add_u32 v{aF}, v{SUB}, 14, v{aF}")
e(f"v_lshrrev_b32 v{g0}, 1, v{G_}"); e(f"v_lshl_add_u32 v{aF}, v{g0}, 13, v{aF}")
e(f"v_and_b32 v{g0}, 1, v{G_}"); e(f"v_lshl_add_u32 v{aF}, v{g0}, 5, v{aF}")
e(f"s_lshl_b32 s{sFP}, s{sHALF}, 19"); e(f"s_lshl_b32 s{sFC}, s{sW}, 17"); e(f"s_add_u32 s{sFP}, s{sFP}, s{sFC}")
e(f"s_lshl_b32 s{sFC}, s{sR5}, 6"); e(f"s_add_u32 s{sFP}, s{sFP}, s{sFC}"); e(f"s_add_u32 s{sFP}, s{sFP}, {WS_F + (2 << 20)}")
wait_tile(19)
read_wfrags(19, 64, agpr=True)
e("s_waitcnt lgkmcnt(0)")
for db in range(8):
    e(f"v_mfma_f32_16x16x32_bf16 {vr(vACC+4*db,4)}, {ar(64+4*db,4)}, {vr(vH,4)}, 0")
publish_F(1)
e(f"s_sub_u32 s{sFP}, s{sFP}, {2 << 20}")
wait_tile(20)
read_wfrags(20, 96, agpr=True)
stamp()
e.wait_vm("og")
check_tags([OG+4*q+k for q in range(6) for k in (1, 3)], o_loads, g0, g0+1)
gm = g0
e(f"v_mov_b32 v{gm}, v{OG+16}")
row_sum(gm, (2, 4, 8), "max_f32")
swap_red(gm, g0+1, 16, "max_f32"); swap_red(gm, g0+1, 32, "max_f32")
e(f"v_sub_f32 v{g0+2}, v{OG+16}, v{gm}"); e(f"v_sub_f32 v{g0+3}, v{OG+20}, v{gm}")
e(f"v_exp_f32 v{g0+2}, v{g0+2}"); e(f"v_exp_f32 v{g0+3}, v{g0+3}")
e(f"v_mul_f32 v{g0+2}, v{g0+2}, v{OG+18}")
row_sum(g0+2, (2, 4, 8))
swap_red(g0+2, g0+1, 16); swap_red(g0+2, g0+1, 32)
e(f"v_rcp_f32 v{g0+4}, v{g0+2}")
OV = vS
for q in range(4):
    for k in range(2):
        e(f"v_mul_f32 v{OV + 4*(q>>1) + 2*(q&1) + k}, v{g0+3}, v{OG + 4*q + 2*k}")
for i in range(8):
    row_sum(OV + i, (2, 4, 8))
e(f"s_lshl_b32 s{sT}, s{sW}, 8"); e(f"s_add_u32 s{sT}, s{sT}, {L_O2}")
e(f"v_lshlrev_b32 v{g0+5}, 7, v{B_}"); e(f"v_lshl_add_u32 v{g0+5}, v{G_}, 5, v{g0+5}")
e(f"v_add_u32 v{g0+6}, s{sT}, v{g0+5}"); e(f"v_add_u32 v{g0+5}, {L_O2}, v{g0+5}")
e(f"s_mov_b64 s[{sEX}:{sEX+1}], exec")
e("s_mov_b32 exec_lo, 0x00030003"); e("s_mov_b32 exec_hi, 0x00030003")
e(f"ds_write_b128 v{g0+6}, {vr(OV,4)}"); e(f"ds_write_b128 v{g0+6}, {vr(OV+4,4)} offset:16")
e(f"s_mov_b64 exec, s[{sEX}:{sEX+1}]")
e(f"v_fma_f32 v{g0+7}, -v{g0+2}, v{g0+4}, 1.0"); e(f"v_fma_f32 v{g0+4}, v{g0+7}, v{g0+4}, v{g0+4}")
e("s_waitcnt lgkmcnt(0)")
e("s_barrier")
for w in range(4):
    for u in range(2):
        e(f"ds_read_b128 {vr(OV + 8 + 8*w + 4*u, 4)}, v{g0+5} offset:{w*256 + u*16}")
e("s_waitcnt lgkmcnt(0)")
for i in range(0, 8, 2):
    a = OV + 8 + i
    e(f"v_pk_add_f32 {vr(a,2)}, {vr(a,2)}, {vr(a+8,2)}"); e(f"v_pk_add_f32 {vr(a+16,2)}, {vr(a+16,2)}, {vr(a+24,2)}")
    e(f"v_pk_add_f32 {vr(a,2)}, {vr(a,2)}, {vr(a+16,2)}")
for i in range(8):
    e(f"v_mul_f32 v{OV+8+i}, v{OV+8+i}, v{g0+4}")
for i in range(4):
    bf16_round_pair(vO + i, OV + 8 + 2*i, OV + 9 + 2*i)
for db in range(8):
    e(f"v_mfma_f32_16x16x32_bf16 {vr(vACC+4*db,4)}, {ar(96+4*db,4)}, {vr(vO,4)}, 0")
publish_F(0)
stamp()
e(f"s_and_b32 s{sT}, s2, 1"); e(f"s_lshr_b32 s{sT+1}, s2, 1")
e(f"s_lshl_b32 s{sT+2}, s{sT}, 20"); e(f"s_lshl_b32 s{sT+3}, s{sT+1}, 13"); e(f"s_add_u32 s{sT+2}, s{sT+2}, s{sT+3}")
e(f"s_add_u32 s{sT+2}, s{sT+2}, {WS_F}")
e(f"s_add_u32 s{sT+3}, s{sT+2}, 4096"); e(f"s_add_u32 s{sT+4}, s{sT+2}, {2 << 20}"); e(f"s_add_u32 s{sT+5}, s{sT+4}, 4096")
FG = vS
f_loads = [f"buffer_load_dwordx4 {vr(FG+4*i,4)}, v{aT16}, {srd('ws')}, s{sT+2+i} offen sc1" for i in (2, 3, 0, 1)]
gather(f_loads, "fg")
e(f"s_lshl_b32 s{sT}, s{sT}, 11"); e(f"s_lshl_b32 s{sT+1}, s{sT+1}, 4"); e(f"s_add_u32 s{sT}, s{sT}, s{sT+1}")
e(f"v_lshlrev_b32 v{g0+8}, 2, v{vLANE}")
e(f"v_and_b32 v{g0+8}, 12, v{g0+8}")
e.vmem(f"buffer_load_dword v{g0+9}, v{g0+8}, {srd('x')}, s{sT} offen", "xr")
e.wait_vm("fg", "xr")
check_tags([FG+4*i+k for i in range(4) for k in (1, 3)], f_loads, g0, g0+1)
FS = FG + 16
e(f"v_add_f32 v{FS}, v{FG}, v{FG+4}"); e(f"v_add_f32 v{FS+1}, v{FG+2}, v{FG+6}")
e(f"v_add_f32 v{FS+2}, v{FG+8}, v{FG+12}"); e(f"v_add_f32 v{FS+3}, v{FG+10}, v{FG+14}")
for i in range(4): row_sum(FS + i, (4, 8))
for i in range(4): swap_red(FS + i, g0 + i, 16)
for i in range(4): swap_red(FS + i, g0 + i, 32)
e(f"s_lshl_b32 s{sT+1}, s{sW}, 6"); e(f"s_add_u32 s{sT+1}, s{sT+1}, {L_FR}")
e(f"v_and_b32 v{g0}, 3, v{vLANE}"); e(f"v_lshlrev_b32 v{g0}, 4, v{g0}")
e(f"v_add_u32 v{g0+1}, s{sT+1}, v{g0}"); e(f"v_add_u32 v{g0}, {L_FR}, v{g0}")
e(f"ds_write_b128 v{g0+1}, {vr(FS,4)}")
e("s_waitcnt lgkmcnt(0)")
e("s_barrier")
e(f"s_cmp_lg_u32 s{sW}, 0")
e("s_cbranch_scc1 FIN")
for w in range(4):
    e(f"ds_read_b128 {vr(FS+4+4*w,4)}, v{g0} offset:{w*64}")
e("s_waitcnt lgkmcnt(0)")
for k in range(0, 4, 2):
    a = FS + 4 + k
    e(f"v_pk_add_f32 {vr(a,2)}, {vr(a,2)}, {vr(a+4,2)}"); e(f"v_pk_add_f32 {vr(a+8,2)}, {vr(a+8,2)}, {vr(a+12,2)}")
    e(f"v_pk_add_f32 {vr(a,2)}, {vr(a,2)}, {vr(a+8,2)}")
a = FS + 4
bf16_round_pair(g0+2, a, a+1); unpack(g0+2, a, a+1)
bf16_round_pair(g0+2, a+2, a+3); unpack(g0+2, a+2, a+3)
unpack(g0+9, g0+4, g0+5)
e(f"v_add_f32 v{a}, v{a}, v{g0+4}"); e(f"v_add_f32 v{a+1}, v{a+1}, v{g0+5}")
bf16_round_pair(g0+2, a, a+1); unpack(g0+2, a, a+1)
e(f"v_add_f32 v{a}, v{a}, v{a+2}"); e(f"v_add_f32 v{a+1}, v{a+1}, v{a+3}")
bf16_round_pair(g0+2, a, a+1)
e("s_mov_b32 exec_lo, 15"); e("s_mov_b32 exec_hi, 0")
e(f"buffer_store_dword v{g0+2}, v{g0+8}, {srd('out')}, s{sT} offen")
e("s_cmp_lg_u32 s2, 0")
e("s_cbranch_scc1 FIN")
e("s_mov_b32 exec_lo, 1")
e(f"v_mov_b32 v{g0+3}, 0")
e(f"buffer_store_dword v{vTAG}, v{g0+3}, {srd('ws')}, 0 offen sc0 sc1")
e("FIN:")
if DBG:
    stamp()
    e("s_waitcnt lgkmcnt(0)")
    e("s_mov_b32 exec_lo, 1"); e("s_mov_b32 exec_hi, 0")
    e(f"s_lshl_b32 s{sT}, s2, 2"); e(f"s_add_u32 s{sT}, s{sT}, s{sW}"); e(f"s_lshl_b32 s{sT}, s{sT}, 7"); e(f"s_add_u32 s{sT}, s{sT}, {WS_DBG}")
    e(f"v_mov_b32 v{g0+3}, 0")
    for i in range(nstamp[0]):
        e(f"v_mov_b32 v{vS+2*i}, s{sSTAMP+2*i}"); e(f"v_mov_b32 v{vS+2*i+1}, s{sSTAMP+2*i+1}")
        e(f"buffer_store_dwordx2 {vr(vS+2*i,2)}, v{g0+3}, {srd('ws')}, s{sT} offen offset:{8*i}")
e("s_endpgm")
body = list(e.lines)
for s in slow: body += s
body += ["DONE:", "s_endpgm"]
body, nn = fix_hazards(body)

hdr = open(os.path.join(os.path.dirname(os.path.abspath(__file__)), "..", "cdna_kernels", NAME + ".s.ref")).read().split("\n")
hdr = [l for l in hdr if l.startswith(";") and "@launch" not in l and "Override" not in l and "grid=ceil" not in l]
out = hdr + [f"; @launch grid=(256,1,1) block=(256,1,1) lds={LDS_BYTES}",
             '.amdgcn_target "amdgcn-amd-amdhsa--gfx950"', ".text", f".globl {NAME}_kernel", ".p2align 8",
             f".type {NAME}_kernel,@function", f"{NAME}_kernel:"]
out += [("" if l.endswith(":") else "    ") + l for l in body]
out += ['.section .rodata,"a"', ".p2align 6", f".amdhsa_kernel {NAME}_kernel",
        "  .amdhsa_next_free_vgpr 512", "  .amdhsa_next_free_sgpr 102", "  .amdhsa_accum_offset 256",
        "  .amdhsa_float_denorm_mode_32 3",
        "  .amdhsa_group_segment_fixed_size 0", "  .amdhsa_kernarg_size 96", "  .amdhsa_user_sgpr_count 2",
        "  .amdhsa_user_sgpr_kernarg_segment_ptr 1", "  .amdhsa_system_sgpr_workgroup_id_x 1", ".end_amdhsa_kernel", ""]
open(sys.argv[1], "w").write("\n".join(out))
print("lines", len(body), "nops inserted", nn, "lds", LDS_BYTES, "stamps", nstamp[0], file=sys.stderr)
```

```python
import sys, os
sys.path.insert(0, os.path.dirname(os.path.abspath(__file__)))
from asmlib import Emit, fix_hazards

NAME = "parallel_sum__gqa_block_cached__swiglu_ffn__decode"
CFG = dict(AHEAD=3, PRE=2, DBG=0, SPIN=30000, QR_AT=2, QR_CHK=5, H3_AT=4, QG_AT=7, FINE=0, PF=0, SPR=1, H_AT=2, FINE2=0, STM=1, ACK=0, TLB=0)
for a in sys.argv[2:]:
    k, v = a.split("="); CFG[k] = int(v, 0)
AHEAD = CFG["AHEAD"]; DBG = CFG["DBG"]
ST = {0: " sc0 sc1", 1: " sc1", 2: " sc1 nt", 3: " sc0 sc1 nt"}[CFG["STM"]]

WS_QP, WS_QF, WS_GU, WS_O, WS_ML, WS_F = 0x10000, 0x90000, 0x100000, 0x200000, 0x400000, 0x480000
WS_DBG = 0x1000000
WS_NUM = 0x2000000 if DBG else 0x1000000
OOB = 0x7ff00000
MISC = 131072
L_R = MISC
L_Q = MISC + 12288
L_H = L_Q + 2176 + 128
L_ML = L_H + 4352
L_O2 = L_ML + 256
L_FR = L_O2 + 1024
LDS_BYTES = L_FR + 256
LDS_BYTES = (LDS_BYTES + 1023) // 1024 * 1024
sW, sGRP, sHI, sR5, sHALF = 3, 4, 5, 6, 7
SRD = dict(K=8, V=12, wq=16, wg=20, wu=24, wo=28, wd=32, ws=36, x=40, out=44)
sTAG, sRING, sKV, sSO = 48, 49, 50, 51
sWQ, sWG, sWO = 86, 87, 88
sT = 90
sSCALE = 64
sL2E = 66
sMASK = 68
sCNT = 69
sEX = 70
sQP, sQPR, sQF, sQFR, sGUP, sGUC, sOP, sMLP, sOC, sFP, sFC = 72, 73, 74, 75, 76, 77, 78, 79, 80, 81, 82
sSTAMP = 84
vTID, vLANE = 0, 1
vKD, vVD, vKR, vTR = 2, 6, 8, 12
vWQD, vWGD, vWOD = 20, 22, 24
vXN, vH, vO = 26, 30, 34
vTAG = 38
vQ = 40
vA = 56
vS, vP, vACC, vFR, vT = 64, 128, 160, 192, 224

e = Emit()
slow = []
nstamp = [0]
def stamp():
    if DBG:
        e(f"s_memrealtime s[{sSTAMP}:{sSTAMP+1}]")
        e("s_waitcnt lgkmcnt(0)")
        e(f"v_writelane_b32 v255, s{sSTAMP}, {nstamp[0]}")
        nstamp[0] += 1
def srd(n): return f"s[{SRD[n]}:{SRD[n]+3}]"
def vr(a, n=1): return f"v{a}" if n == 1 else f"v[{a}:{a+n-1}]"
def ar(a, n=1): return f"a{a}" if n == 1 else f"a[{a}:{a+n-1}]"

TILES = ["wq", "wg", "wu"] + [f"K{i}" for i in range(8)] + [f"V{i}" for i in range(8)] + ["wd", "wo"]
issued = [0]
def issue_tile(idx):
    t = TILES[idx]; slot = idx % 4; tag = ("tile", idx)
    if t[0] in "KV":
        n = int(t[1]); rs = srd(t[0])
        for h in range(2):
            e(f"s_add_u32 m0, s{sRING}, {slot*8192 + h*4096}")
            e(f"s_add_u32 s{sSO}, s{sKV}, {n*32768 + h*4096}")
            for jj in range(4):
                v = vKD + jj if t[0] == "K" else vVD + (jj & 1)
                off = f" offset:{jj*1024}" if jj else ""
                e.vmem(f"buffer_load_dwordx4 v{v}, {rs}, s{sSO} offen{off} nt lds", tag)
    else:
        pitch, vb, sb = {"wq": (8192, vWQD, sWQ), "wg": (7168, vWGD, sWG), "wu": (7168, vWGD, sWG),
                         "wo": (2048, vWOD, sWO), "wd": (2048, vWOD, sWO)}[t]
        for p in range(4):
            e(f"s_add_u32 m0, s{sRING}, {slot*8192 + p*2048}")
            e(f"s_add_u32 s{sSO}, s{sb}, {8*p*pitch}")
            e.vmem(f"buffer_load_dwordx4 v{vb}, {srd(t)}, s{sSO} offen nt lds", tag)
            e.vmem(f"buffer_load_dwordx4 v{vb+1}, {srd(t)}, s{sSO} offen offset:1024 nt lds", tag)
def issue_next():
    if issued[0] < len(TILES):
        issue_tile(issued[0]); issued[0] += 1
def top_up(idx, ahead=None):
    while issued[0] < len(TILES) and issued[0] <= idx + (ahead or AHEAD): issue_next()
def wait_tile(idx):
    e.wait_vm(("tile", idx))

def read_wfrags(idx, dst, agpr=False):
    slot = idx % 4
    for db in range(8):
        for u in range(2):
            r = dst + db*4 + u*2
            d = ar(r, 2) if agpr else vr(r, 2)
            e(f"ds_read_b64_tr_b16 {d}, v{vTR+db} offset:{slot*8192 + u*4096}")

gid = [0]
def check_tags(tagregs, reissue, t0, t1):
    def chk(out):
        rs = list(tagregs)
        if len(rs) == 1:
            out(f"v_cmp_ne_u32 vcc, s{sTAG}, v{rs[0]}")
            return
        for op, t in (("min", t0), ("max", t1)):
            r = list(rs)
            cur = None
            while r:
                if cur is None:
                    if len(r) >= 3:
                        out(f"v_{op}3_u32 v{t}, v{r[0]}, v{r[1]}, v{r[2]}"); r = r[3:]
                    else:
                        out(f"v_{op}_u32 v{t}, v{r[0]}, v{r[1]}"); r = r[2:]
                    cur = t
                elif len(r) >= 2:
                    out(f"v_{op}3_u32 v{t}, v{t}, v{r[0]}, v{r[1]}"); r = r[2:]
                else:
                    out(f"v_{op}_u32 v{t}, v{t}, v{r[0]}"); r = r[1:]
        out(f"v_xor_b32 v{t0}, s{sTAG}, v{t0}")
        out(f"v_xor_b32 v{t1}, s{sTAG}, v{t1}")
        out(f"v_or_b32 v{t0}, v{t0}, v{t1}")
        out(f"v_cmp_ne_u32 vcc, 0, v{t0}")
    g = gid[0]; gid[0] += 1
    chk(e)
    e(f"s_cbranch_vccnz SLOW{g}")
    e(f"BACK{g}:")
    s = []
    s.append(f"SLOW{g}:")
    s.append(f"s_mov_b32 s{sCNT}, {CFG['SPIN']}")
    s.append(f"LOOP{g}:")
    s.append("s_mov_b64 exec, vcc")
    s += reissue
    s.append("s_waitcnt vmcnt(0)")
    chk(s.append)
    s.append(f"s_cbranch_vccz OUT{g}")
    s.append(f"s_sub_u32 s{sCNT}, s{sCNT}, 1")
    s.append(f"s_cmp_lg_u32 s{sCNT}, 0")
    s.append(f"s_cbranch_scc1 LOOP{g}")
    s.append(f"OUT{g}:")
    s.append("s_mov_b64 exec, -1")
    if DBG:
        s.append(f"s_sub_u32 s{sCNT}, {CFG['SPIN'] + 1}, s{sCNT}")
        s.append(f"v_writelane_b32 v255, s{sCNT}, {27 + g}")
    s.append(f"s_branch BACK{g}")
    slow.append(s)

def gather(loads, tag):
    for l in loads: e.vmem(l, tag)

def bf16_round_pair(dst_pk, a, b):
    e(f"v_cvt_pk_bf16_f32 v{dst_pk}, v{a}, v{b}")
def unpack(pk, lo, hi):
    e(f"v_and_b32 v{hi}, s{sMASK}, v{pk}")
    e(f"v_lshlrev_b32 v{lo}, 16, v{pk}")
def row_sum(reg, rors, op="add_f32"):
    for r in rors:
        e(f"v_{op}_dpp v{reg}, v{reg}, v{reg} row_ror:{r} row_mask:0xf bank_mask:0xf")
def swap_red(reg, tmp, which, op="add_f32"):
    e(f"v_mov_b32 v{tmp}, v{reg}")
    e(f"v_permlane{which}_swap_b32 v{reg}, v{tmp}")
    e(f"v_{op} v{reg}, v{reg}, v{tmp}")

e(f"s_cmp_ge_u32 s2, 256")
e(f"s_cbranch_scc1 DONE")
e("s_load_dwordx16 s[52:67], s[0:1], 0")
e("s_load_dwordx8 s[68:75], s[0:1], 64")
if DBG: e("v_mov_b32 v255, 0")
stamp()
e(f"v_and_b32 v{vLANE}, 63, v0")
e(f"v_lshrrev_b32 v{vT}, 6, v0")
e(f"v_readfirstlane_b32 s{sW}, v{vT}")
e(f"s_and_b32 s{sGRP}, s2, 7")
e(f"s_lshr_b32 s{sHI}, s2, 3")
e(f"s_and_b32 s{sHALF}, s{sHI}, 1")
e(f"s_lshr_b32 s{sR5}, s{sHI}, 1")
e(f"s_lshl_b32 s{sSO}, s{sGRP}, 4")
e(f"s_add_u32 s{sR5}, s{sR5}, s{sSO}")
N_, G_, B_ = vT, vT+1, vT+2
e(f"v_and_b32 v{N_}, 15, v{vLANE}")
e(f"v_lshrrev_b32 v{G_}, 4, v{vLANE}")
e(f"v_and_b32 v{B_}, 1, v{vLANE}")
e("s_waitcnt lgkmcnt(0)")
stamp()
ptr = dict(x=52, K=54, V=56, wq=58, wo=60, wg=64, wu=66, wd=68, out=70, ws=74)
size = dict(x=4096, K=64 << 20, V=64 << 20, wq=8 << 20, wo=8 << 20, wg=7 << 20, wu=7 << 20, wd=7 << 20, out=4096, ws=WS_NUM)
def mk_srd(*names):
    for n in names:
        b = SRD[n]
        e(f"s_mov_b64 s[{b}:{b+1}], s[{ptr[n]}:{ptr[n]+1}]")
        e(f"s_mov_b32 s{b+2}, {size[n]}")
        e(f"s_mov_b32 s{b+3}, 0x20000")
t = vT + 5
def wvoff(dst, pitch):
    for par in range(2):
        e(f"v_add_u32 v{t}, {4*par}, v{G_}")
        e(f"v_lshlrev_b32 v{t+1}, 1, v{t}")
        e(f"v_xor_b32 v{t+1}, v{t+1}, v{N_}")
        e(f"v_lshlrev_b32 v{t+1}, 4, v{t+1}")
        e(f"v_mul_u32_u24 v{t}, {pitch}, v{t}")
        e(f"v_add_u32 v{dst+par}, v{t}, v{t+1}")
        if par: e(f"v_subrev_u32 v{dst+par}, 1024, v{dst+par}")
mk_srd("x", "wq")
e(f"s_load_dword s{sTAG}, s[74:75], 0")
XS = vS
e(f"v_lshlrev_b32 v{vT+3}, 6, v{vLANE}")
for i in range(4):
    e.vmem(f"buffer_load_dwordx4 {vr(XS+4*i,4)}, v{vT+3}, {srd('x')}, 0 offen offset:{16*i}", "xs")
XF = vS + 16
e(f"s_lshl_b32 s{sT}, s{sGRP}, 7")
e(f"s_lshl_b32 s{sT+1}, s{sW}, 5")
e(f"s_add_u32 s{sT}, s{sT}, s{sT+1}")
e(f"s_lshl_b32 s{sT+2}, s{sT}, 1")
e(f"v_lshlrev_b32 v{vT+4}, 11, v{B_}")
e(f"v_lshl_add_u32 v{vT+4}, v{G_}, 3, v{vT+4}")
e.vmem(f"buffer_load_dwordx2 {vr(XF,2)}, v{vT+4}, {srd('x')}, s{sT+2} offen", "xf")
e.vmem(f"buffer_load_dwordx2 {vr(XF+2,2)}, v{vT+4}, {srd('x')}, s{sT+2} offen offset:32", "xf")
e(f"s_lshl_b32 s{sRING}, s{sW}, 15")
e(f"s_lshl_b32 s{sT+1}, s{sHI}, 8")
e(f"s_lshl_b32 s{sWQ}, s{sT}, 13")
e(f"s_add_u32 s{sWQ}, s{sWQ}, s{sT+1}")
wvoff(vWQD, 8192)
if CFG["FINE"]: stamp()
issue_next()
if CFG["FINE"]: stamp()
mk_srd("wg", "wu")
e(f"s_mul_i32 s{sWG}, s{sT}, 7168")
e(f"s_add_u32 s{sWG}, s{sWG}, s{sT+1}")
e(f"s_cmp_ge_u32 s{sHI}, 28")
e(f"s_cselect_b32 s{sWG}, 0, s{sWG}")
e(f"s_cselect_b32 s{SRD['wg']+2}, 0, s{SRD['wg']+2}")
e(f"s_cselect_b32 s{SRD['wu']+2}, 0, s{SRD['wu']+2}")
wvoff(vWGD, 7168)
for i in range(min(CFG["PRE"], 3) - 1): issue_next()
if CFG["FINE"]: stamp()
if CFG["PF"]:
    e(f"s_getpc_b64 s[{sT+4}:{sT+5}]")
    e("PCREF:")
    e(f"v_lshlrev_b32 v{vT+6}, 7, v0")
    e(f"v_min_u32 v{vT+6}, CODE_END-PCREF-4, v{vT+6}")
    e(f"v_mov_b32 v{vT+7}, s{sT+5}")
    e(f"v_add_co_u32 v{vT+6}, vcc, s{sT+4}, v{vT+6}")
    e(f"v_addc_co_u32 v{vT+7}, vcc, 0, v{vT+7}, vcc")
    e.vmem(f"global_load_dword v254, v[{vT+6}:{vT+7}], off", "pf")
mk_srd("ws", "K", "V", "wo", "wd", "out")
e(f"s_lshl_b32 s{sKV}, s{sGRP}, 23")
e(f"s_lshl_b32 s{sT}, s{sHI}, 18")
e(f"s_add_u32 s{sKV}, s{sKV}, s{sT}")
e(f"s_lshl_b32 s{sT}, s{sW}, 13")
e(f"s_add_u32 s{sKV}, s{sKV}, s{sT}")
e(f"s_lshl_b32 s{sWO}, s{sR5}, 16")
e(f"s_lshl_b32 s{sT}, s{sHALF}, 10")
e(f"s_add_u32 s{sWO}, s{sWO}, s{sT}")
e(f"s_lshl_b32 s{sT}, s{sW}, 8")
e(f"s_add_u32 s{sWO}, s{sWO}, s{sT}")
e(f"s_cmp_ge_u32 s{sR5}, 112")
e(f"s_cselect_b32 s{SRD['wd']+2}, 0, s{SRD['wd']+2}")
if CFG["TLB"]:
    e(f"v_mov_b32 v{t}, 0")
    if CFG["TLB"] & 1:
        e.vmem(f"buffer_load_dword v254, v{t}, {srd('K')}, s{sKV} offen nt", "pf")
        e.vmem(f"buffer_load_dword v254, v{t}, {srd('V')}, s{sKV} offen nt", "pf")
    if CFG["TLB"] & 2:
        e.vmem(f"buffer_load_dword v254, v{t}, {srd('wo')}, s{sWO} offen nt", "pf")
        e.vmem(f"buffer_load_dword v254, v{t}, {srd('wd')}, s{sWO} offen nt", "pf")
    if CFG["TLB"] & 4:
        e(f"v_min_u32 v{t+1}, 4, v{vLANE}")
        e(f"v_lshlrev_b32 v{t+1}, 21, v{t+1}")
        e(f"s_lshl_b32 s{sT}, s2, 2"); e(f"s_add_u32 s{sT}, s{sT}, s{sW}"); e(f"s_lshl_b32 s{sT}, s{sT}, 8")
        e.vmem(f"buffer_load_dword v254, v{t+1}, {srd('ws')}, s{sT} offen sc1", "pf")
for j in range(4):
    e(f"v_add_u32 v{t}, {4*j}, v{G_}")
    e(f"v_xor_b32 v{t}, v{t}, v{N_}")
    e(f"v_lshlrev_b32 v{t}, 4, v{t}")
    e(f"v_lshl_add_u32 v{vKD+j}, v{G_}, 8, v{t}")
for par in range(2):
    e(f"v_add_u32 v{t}, {4*par}, v{G_}")
    e(f"v_lshlrev_b32 v{t}, 1, v{t}")
    e(f"v_xor_b32 v{t}, v{t}, v{N_}")
    e(f"v_lshlrev_b32 v{t}, 4, v{t}")
    e(f"v_lshl_add_u32 v{vVD+par}, v{G_}, 8, v{t}")
for i in range(CFG["PRE"] - 3): issue_next()
wvoff(vWOD, 2048)
e(f"v_lshlrev_b32 v{t+1}, 8, v{N_}")
e(f"v_add_u32 v{t+1}, s{sRING}, v{t+1}")
for s in range(4):
    e(f"v_add_u32 v{t}, {4*s}, v{G_}")
    e(f"v_xor_b32 v{t}, v{t}, v{N_}")
    e(f"v_lshl_add_u32 v{vKR+s}, v{t}, 4, v{t+1}")
e(f"v_lshrrev_b32 v{t}, 2, v{vLANE}")
e(f"v_and_b32 v{t+1}, 7, v{t}")
e(f"v_lshlrev_b32 v{t}, 8, v{t}")
e(f"v_add_u32 v{t}, s{sRING}, v{t}")
e(f"v_and_b32 v{t+2}, 3, v{vLANE}")
e(f"v_lshlrev_b32 v{t+2}, 3, v{t+2}")
e(f"v_add_u32 v{t}, v{t}, v{t+2}")
for db in range(8):
    e(f"v_xor_b32 v{t+2}, {db}, v{t+1}")
    e(f"v_lshl_add_u32 v{vTR+db}, v{t+2}, 5, v{t}")
stamp()
e("s_waitcnt lgkmcnt(0)")
e(f"s_lshl_b32 s{sT}, s{sHI}, 14"); e(f"s_lshl_b32 s{sT+1}, s{sGRP}, 10")
e(f"s_add_u32 s{sT}, s{sT}, s{sT+1}"); e(f"s_add_u32 s{sQP}, s{sT}, {WS_QP}")
e(f"s_lshr_b32 s{sT}, s{sGRP}, 2"); e(f"s_and_b32 s{sT+1}, s{sGRP}, 3")
e(f"s_lshl_b32 s{sT+2}, s{sT+1}, 2"); e(f"s_add_u32 s{sT+2}, s{sT+2}, s{sW}")
e(f"s_lshl_b32 s{sT+3}, s{sHI}, 14"); e(f"s_lshl_b32 s{sT+4}, s{sT}, 13")
e(f"s_add_u32 s{sT+3}, s{sT+3}, s{sT+4}"); e(f"s_lshl_b32 s{sT+4}, s{sT+2}, 6")
e(f"s_add_u32 s{sT+3}, s{sT+3}, s{sT+4}"); e(f"s_add_u32 s{sQPR}, s{sT+3}, {WS_QP}")
e(f"s_lshl_b32 s{sT+3}, s{sT}, 14"); e(f"s_lshl_b32 s{sT+4}, s{sHI}, 9")
e(f"s_add_u32 s{sT+3}, s{sT+3}, s{sT+4}"); e(f"s_lshl_b32 s{sT+4}, s{sT+2}, 5")
e(f"s_add_u32 s{sT+3}, s{sT+3}, s{sT+4}"); e(f"s_add_u32 s{sQF}, s{sT+3}, {WS_QF}")
e(f"s_lshl_b32 s{sT+3}, s{sGRP}, 12"); e(f"s_add_u32 s{sQFR}, s{sT+3}, {WS_QF}")
e(f"s_lshl_b32 s{sT+3}, s{sHI}, 15"); e(f"s_lshl_b32 s{sT+4}, s{sGRP}, 9"); e(f"s_add_u32 s{sT+3}, s{sT+3}, s{sT+4}")
e(f"s_lshr_b32 s{sT+4}, s{sW}, 1"); e(f"s_lshl_b32 s{sT+4}, s{sT+4}, 12"); e(f"s_add_u32 s{sT+3}, s{sT+3}, s{sT+4}")
e(f"s_and_b32 s{sT+4}, s{sW}, 1"); e(f"s_lshl_b32 s{sT+4}, s{sT+4}, 8"); e(f"s_add_u32 s{sT+3}, s{sT+3}, s{sT+4}")
e(f"s_add_u32 s{sGUP}, s{sT+3}, {WS_GU}")
e(f"s_lshl_b32 s{sT+3}, s{sR5}, 13"); e(f"s_add_u32 s{sGUC}, s{sT+3}, {WS_GU}")
e(f"s_lshl_b32 s{sT+3}, s2, 0");
e(f"s_lshl_b32 s{sT+3}, s{sGRP}, 5"); e(f"s_add_u32 s{sT+3}, s{sT+3}, s{sHI}"); e(f"s_lshl_b32 s{sT+3}, s{sT+3}, 13")
e(f"s_add_u32 s{sOP}, s{sT+3}, {WS_O}")
e(f"s_lshl_b32 s{sT+3}, s{sGRP}, 12"); e(f"s_lshl_b32 s{sT+4}, s{sHI}, 4"); e(f"s_add_u32 s{sT+3}, s{sT+3}, s{sT+4}")
e(f"s_add_u32 s{sMLP}, s{sT+3}, {WS_ML}")
e(f"s_mov_b32 s{sSCALE}, 0x3db504f3"); e(f"s_mov_b32 s{sSCALE+1}, 0x3db504f3")
e(f"s_mov_b32 s{sL2E}, 0x3fb8aa3b"); e(f"s_mov_b32 s{sL2E+1}, 0x3fb8aa3b")
e(f"s_mov_b32 s{sMASK}, 0xffff0000")

e("s_waitcnt lgkmcnt(0)")
e(f"s_mul_i32 s{sTAG}, s{sTAG}, 1664525")
e(f"s_add_u32 s{sTAG}, s{sTAG}, 1013904223")
e(f"v_mov_b32 v{vTAG}, s{sTAG}")
stamp()
e.wait_vm("xs")
stamp()
X = vS + 24
for i in range(16):
    unpack(XS + i, X + 2*i, X + 2*i + 1)
acc = vT + 4
e(f"v_pk_add_f32 {vr(acc,2)}, {vr(X,2)}, {vr(X+2,2)}")
for i in range(2, 16):
    e(f"v_pk_add_f32 {vr(acc,2)}, {vr(acc,2)}, {vr(X+2*i,2)}")
e(f"v_add_f32 v{acc}, v{acc}, v{acc+1}")
row_sum(acc, (8, 4, 2, 1))
swap_red(acc, acc+1, 16)
e(f"v_mul_f32 v{acc}, 0x3a800000, v{acc}")
e(f"v_mov_b32 v{acc+1}, v{acc}")
va = acc + 2
for i in range(16):
    e(f"v_pk_add_f32 {vr(X+2*i,2)}, {vr(X+2*i,2)}, {vr(acc,2)} neg_lo:[0,1] neg_hi:[0,1]")
e(f"v_pk_mul_f32 {vr(va,2)}, {vr(X,2)}, {vr(X,2)}")
for i in range(1, 16):
    e(f"v_pk_fma_f32 {vr(va,2)}, {vr(X+2*i,2)}, {vr(X+2*i,2)}, {vr(va,2)}")
e(f"v_add_f32 v{va}, v{va}, v{va+1}")
row_sum(va, (8, 4, 2, 1))
swap_red(va, va+1, 16)
e(f"v_mul_f32 v{va}, 0x3a800000, v{va}")
bf16_round_pair(acc, acc, va)
unpack(acc, acc+1, va)
e(f"v_add_f32 v{va}, 0x3727c5ac, v{va}")
bf16_round_pair(va, va, va)
e(f"v_and_b32 v{va}, s{sMASK}, v{va}")
e(f"v_sqrt_f32 v{va}, v{va}")
bf16_round_pair(va, va, va)
e(f"v_and_b32 v{va}, s{sMASK}, v{va}")
e(f"v_readlane_b32 s{sT}, v{acc+1}, 0")
e(f"v_readlane_b32 s{sT+1}, v{acc+1}, 32")
e(f"v_readlane_b32 s{sT+2}, v{va}, 0")
e(f"v_readlane_b32 s{sT+3}, v{va}, 32")
e(f"v_cmp_eq_u32 vcc, 1, v{B_}")
e(f"v_mov_b32 v{acc}, s{sT}"); e(f"v_mov_b32 v{acc+1}, s{sT+1}")
e(f"v_cndmask_b32 v{acc}, v{acc}, v{acc+1}, vcc")
e(f"v_mov_b32 v{va}, s{sT+2}"); e(f"v_mov_b32 v{va+1}, s{sT+3}")
e(f"v_cndmask_b32 v{va}, v{va}, v{va+1}, vcc")
e(f"v_rcp_f32 v{va+1}, v{va}")
e.wait_vm("xf")
Y = X
for i in range(4):
    unpack(XF + i, Y + 2*i, Y + 2*i + 1)
for i in range(8):
    e(f"v_sub_f32 v{Y+i}, v{Y+i}, v{acc}")
for i in range(4):
    bf16_round_pair(XF + i, Y + 2*i, Y + 2*i + 1)
    unpack(XF + i, Y + 2*i, Y + 2*i + 1)
for i in range(8):
    e(f"v_mul_f32 v{Y+8+i}, v{Y+i}, v{va+1}")
    e(f"v_fma_f32 v{Y+i}, -v{Y+8+i}, v{va}, v{Y+i}")
    e(f"v_fma_f32 v{Y+i}, v{Y+i}, v{va+1}, v{Y+8+i}")
for i in range(4):
    bf16_round_pair(vXN + i, Y + 2*i, Y + 2*i + 1)
aRW, aT8, aLN16, aT16, aN272 = vA, vA+1, vA+2, vA+3, vA+4
e(f"s_lshl_b32 s{sT}, s{sW}, 10"); e(f"s_add_u32 s{sT}, s{sT}, {L_R}")
e(f"v_lshlrev_b32 v{aRW}, 9, v{B_}"); e(f"v_lshl_add_u32 v{aRW}, v{G_}, 4, v{aRW}"); e(f"v_add_u32 v{aRW}, s{sT}, v{aRW}")
e(f"v_lshlrev_b32 v{aT16}, 4, v0")
e(f"v_mul_u32_u24 v{aN272}, 272, v{N_}"); e(f"v_lshl_add_u32 v{aN272}, v{G_}, 4, v{aN272}")
stamp()

def proj_tile(idx, mat):
    wait_tile(idx)
    if idx == 0: stamp()
    read_wfrags(idx, vFR)
    e("s_waitcnt lgkmcnt(0)")
    return
def proj_mfma(mat, bfrag):
    for db in range(8):
        e(f"v_mfma_f32_16x16x32_bf16 {vr(vACC+4*db,4)}, {vr(vFR+4*db,4)}, {vr(bfrag,4)}, 0")
def proj_write(mat):
    e(f"s_mov_b64 s[{sEX}:{sEX+1}], exec")
    e("s_mov_b32 exec_lo, 0x00030003"); e("s_mov_b32 exec_hi, 0x00030003")
    for db in range(8):
        e(f"ds_write_b128 v{aRW}, {vr(vACC+4*db,4)} offset:{mat*4096 + db*64}")
    e(f"s_mov_b64 exec, s[{sEX}:{sEX+1}]")

proj_tile(0, 0)
proj_mfma(0, vXN)
proj_write(0)
e("s_waitcnt lgkmcnt(0)")
e("s_barrier")
g0 = vT + 8
e(f"v_lshlrev_b32 v{g0+7}, 2, v0")
for w in range(4):
    e(f"ds_read_b32 v{g0+w}, v{g0+7} offset:{L_R - MISC + w*1024 + 0}" if False else f"ds_read_b32 v{g0+w}, v{aT8} offset:{w*1024}") if False else None
e(f"v_add_u32 v{g0+7}, {L_R}, v{g0+7}")
for w in range(4):
    e(f"ds_read_b32 v{g0+w}, v{g0+7} offset:{w*1024}")
e(f"v_and_b32 v{g0+6}, 127, v0"); e(f"v_lshlrev_b32 v{g0+6}, 3, v{g0+6}")
e(f"v_lshrrev_b32 v{g0+5}, 7, v0"); e(f"v_lshl_add_u32 v{g0+6}, v{g0+5}, 13, v{g0+6}")
e("s_waitcnt lgkmcnt(0)")
e(f"v_add_f32 v{g0}, v{g0}, v{g0+1}"); e(f"v_add_f32 v{g0+2}, v{g0+2}, v{g0+3}")
e(f"v_add_f32 v{g0}, v{g0}, v{g0+2}"); e(f"v_mov_b32 v{g0+1}, v{vTAG}")
e.vmem(f"buffer_store_dwordx2 {vr(g0,2)}, v{g0+6}, {srd('ws')}, s{sQP} offen{ST}", "st")
stamp()
top_up(0)
proj_tile(1, 1)
top_up(1)
proj_mfma(1, vXN)
proj_write(1)
proj_tile(2, 2)
QR = vS
aQR = vA + 5
e(f"v_and_b32 v{aQR}, 31, v{vLANE}")
e(f"v_lshrrev_b32 v{g0}, 2, v{aQR}"); e(f"v_and_b32 v{aQR}, 3, v{aQR}")
e(f"v_lshlrev_b32 v{aQR}, 4, v{aQR}"); e(f"v_lshl_add_u32 v{aQR}, v{g0}, 10, v{aQR}")
qr_loads = [f"buffer_load_dwordx4 {vr(QR,4)}, v{aQR}, {srd('ws')}, s{sQPR} offen sc1"]
gather(qr_loads, "qr")
top_up(2)
proj_mfma(2, vXN)
proj_write(2)
e("s_waitcnt lgkmcnt(0)")
e("s_barrier")
e(f"s_lshr_b32 s{sT}, s{sW}, 1"); e(f"s_lshl_b32 s{sT}, s{sT}, 12"); e(f"s_and_b32 s{sT+1}, s{sW}, 1")
e(f"s_lshl_b32 s{sT+1}, s{sT+1}, 9"); e(f"s_add_u32 s{sT}, s{sT}, s{sT+1}"); e(f"s_add_u32 s{sT}, s{sT}, {L_R + 4096}")
e(f"v_lshlrev_b32 v{g0+12}, 3, v{vLANE}"); e(f"v_add_u32 v{g0+12}, s{sT}, v{g0+12}")
for w in range(4):
    e(f"ds_read_b64 {vr(g0+2*w,2)}, v{g0+12} offset:{w*1024}")
e(f"v_lshlrev_b32 v{g0+13}, 4, v{N_}"); e(f"v_lshl_add_u32 v{g0+13}, v{G_}, 13, v{g0+13}")
e("s_waitcnt lgkmcnt(0)")
e(f"v_pk_add_f32 {vr(g0,2)}, {vr(g0,2)}, {vr(g0+2,2)}"); e(f"v_pk_add_f32 {vr(g0+4,2)}, {vr(g0+4,2)}, {vr(g0+6,2)}")
e(f"v_pk_add_f32 {vr(g0,2)}, {vr(g0,2)}, {vr(g0+4,2)}")
e(f"v_mov_b32 v{g0+2}, v{g0+1}"); e(f"v_mov_b32 v{g0+1}, v{vTAG}"); e(f"v_mov_b32 v{g0+3}, v{vTAG}")
e.vmem(f"buffer_store_dwordx4 {vr(g0,4)}, v{g0+13}, {srd('ws')}, s{sGUP} offen{ST}", "st")
stamp()

HG = vFR
def compute_h():
    e(f"v_add_u32 v{g0+1}, {L_H}, v{aN272}")
    for m in range(2):
        for u in range(2):
            e(f"ds_read_b128 {vr(HG + 8*m + 4*u, 4)}, v{g0+1} offset:{m*128 + u*64}")
    e("s_waitcnt lgkmcnt(0)")
    for i in range(16):
        row_sum(HG + i, (2, 4, 8))
    for i in range(8):
        bf16_round_pair(g0 + i, HG + 2*i, HG + 2*i + 1)
        unpack(g0 + i, HG + 2*i, HG + 2*i + 1)
    e(f"s_mov_b32 s{sT}, 0xbfb8aa3b")
    for i in range(8):
        e(f"v_mul_f32 v{g0+i}, s{sT}, v{HG+i}")
    for i in range(8):
        e(f"v_exp_f32 v{g0+i}, v{g0+i}")
    for i in range(8):
        e(f"v_add_f32 v{g0+i}, 1.0, v{g0+i}")
    for i in range(8):
        e(f"v_rcp_f32 v{g0+i}, v{g0+i}")
    for i in range(8):
        e(f"v_mul_f32 v{HG+i}, v{HG+i}, v{g0+i}")
    for i in range(4):
        bf16_round_pair(g0 + i, HG + 2*i, HG + 2*i + 1)
        unpack(g0 + i, HG + 2*i, HG + 2*i + 1)
    for i in range(8):
        e(f"v_mul_f32 v{HG+i}, v{HG+i}, v{HG+8+i}")
    for i in range(4):
        bf16_round_pair(vH + i, HG + 2*i, HG + 2*i + 1)

def k_tile(idx):
    n = idx - 3; slot = idx % 4
    wait_tile(idx)
    for u in range(2):
        for s in range(4):
            e(f"ds_read_b128 {ar(n*32 + u*16 + s*4, 4)}, v{vKR+s} offset:{slot*8192 + u*4096}")
    e("s_waitcnt lgkmcnt(0)")
GU = vS + 8
QG = vS + 16
gu_loads = [f"buffer_load_dwordx4 {vr(GU+4*m,4)}, v{aT16}, {srd('ws')}, s{sGUC} offen offset:{0}" .replace("offset:0", "") + (f" offset:{4095}" if False else "") for m in range(1)]
sGUC2 = 83
e(f"s_add_u32 s{sGUC2}, s{sGUC}, 4096")
gu_loads = [f"buffer_load_dwordx4 {vr(GU,4)}, v{aT16}, {srd('ws')}, s{sGUC} offen sc1",
            f"buffer_load_dwordx4 {vr(GU+4,4)}, v{aT16}, {srd('ws')}, s{sGUC2} offen sc1"]
qg_loads = [f"buffer_load_dwordx4 {vr(QG,4)}, v{aT16}, {srd('ws')}, s{sQFR} offen sc1"]
for idx in range(3, 11):
    k_tile(idx)
    if idx == CFG["H3_AT"]: gather(gu_loads, "gu")
    if idx == CFG["QG_AT"]: gather(qg_loads, "qg")
    if idx != CFG["QR_CHK"]: top_up(idx)
    if idx == CFG["QR_CHK"]:
        e.wait_vm("qr")
        check_tags([QR+1, QR+3], qr_loads, g0, g0+1)
        for r in (QR, QR+2):
            row_sum(r, (4, 8))
            swap_red(r, g0, 16)
        e(f"v_cvt_pk_bf16_f32 v{g0}, v{QR}, v{QR+2}")
        e(f"v_mov_b32 v{g0+1}, v{vTAG}")
        e(f"v_lshlrev_b32 v{g0+2}, 3, v{vLANE}"); e(f"v_mov_b32 v{g0+3}, {OOB}")
        e(f"v_cmp_gt_u32 vcc, 4, v{vLANE}")
        e(f"v_cndmask_b32 v{g0+2}, v{g0+3}, v{g0+2}, vcc")
        e.vmem(f"buffer_store_dwordx2 {vr(g0,2)}, v{g0+2}, {srd('ws')}, s{sQF} offen{ST}", "st")
        stamp()
        top_up(idx)
stamp()
e.wait_vm("gu", "qg")
check_tags([GU+1, GU+3, GU+5, GU+7, QG+1, QG+3], gu_loads + qg_loads, g0, g0+1)
e(f"v_lshrrev_b32 v{g0}, 5, v0"); e(f"v_mul_u32_u24 v{g0}, 272, v{g0}"); e(f"v_and_b32 v{g0+1}, 31, v0")
e(f"v_lshl_add_u32 v{g0}, v{g0+1}, 3, v{g0}"); e(f"v_add_u32 v{g0}, {L_Q}, v{g0}")
e(f"v_mov_b32 v{QG+1}, v{QG+2}")
e(f"ds_write_b64 v{g0}, {vr(QG,2)}")
e(f"v_lshrrev_b32 v{g0+2}, 4, v0"); e(f"v_mul_u32_u24 v{g0+2}, 272, v{g0+2}")
e(f"v_lshl_add_u32 v{g0+2}, v{N_}, 3, v{g0+2}"); e(f"v_add_u32 v{g0+2}, {L_H}, v{g0+2}")
for m in range(2):
    e(f"v_mov_b32 v{GU+4*m+1}, v{GU+4*m+2}")
    e(f"ds_write_b64 v{g0+2}, {vr(GU+4*m,2)} offset:{128*m}")
e("s_waitcnt lgkmcnt(0)")
e("s_barrier")
e(f"v_and_b32 v{g0}, 7, v{N_}"); e(f"v_mul_u32_u24 v{g0}, 272, v{g0}"); e(f"v_lshl_add_u32 v{g0}, v{G_}, 4, v{g0}")
e(f"v_add_u32 v{g0}, {L_Q}, v{g0}")
for s in range(4):
    e(f"ds_read_b128 {vr(vQ+4*s,4)}, v{g0} offset:{s*64}")
e("s_waitcnt lgkmcnt(0)")
for s in range(4):
    for T in range(8):
        for u in range(2):
            d = vr(vS + T*8 + u*4, 4)
            e(f"v_mfma_f32_16x16x32_bf16 {d}, {ar(T*32 + u*16 + s*4, 4)}, {vr(vQ+4*s,4)}, {'0' if s == 0 else d}")
stamp()
if CFG["SPR"]: top_up(10, 3)
tp = vFR
for i in range(32):
    bf16_round_pair(tp + i, vS + 2*i, vS + 2*i + 1)
for i in range(32):
    unpack(tp + i, vS + 2*i, vS + 2*i + 1)
for i in range(32):
    e(f"v_pk_mul_f32 {vr(vS+2*i,2)}, {vr(vS+2*i,2)}, s[{sSCALE}:{sSCALE+1}]")
for i in range(32):
    bf16_round_pair(tp + i, vS + 2*i, vS + 2*i + 1)
for i in range(32):
    unpack(tp + i, vS + 2*i, vS + 2*i + 1)
vM, vL = vA + 6, vA + 7
for c in range(4):
    e(f"v_max3_f32 v{g0+c}, v{vS+16*c}, v{vS+16*c+1}, v{vS+16*c+2}")
for i in range(6):
    for c in range(4):
        e(f"v_max3_f32 v{g0+c}, v{g0+c}, v{vS+16*c+3+2*i}, v{vS+16*c+4+2*i}")
for c in range(4):
    e(f"v_max_f32 v{g0+c}, v{g0+c}, v{vS+16*c+15}")
e(f"v_max3_f32 v{g0}, v{g0}, v{g0+1}, v{g0+2}"); e(f"v_max_f32 v{vM}, v{g0}, v{g0+3}")
if CFG["SPR"]: top_up(10, 4)
swap_red(vM, g0, 32, "max_f32"); swap_red(vM, g0, 16, "max_f32")
e(f"v_mul_f32 v{vM}, s{sL2E}, v{vM}")
e(f"v_sub_f32 v{g0}, 0, v{vM}"); e(f"v_mov_b32 v{g0+1}, v{g0}")
for i in range(32):
    e(f"v_pk_fma_f32 {vr(vS+2*i,2)}, {vr(vS+2*i,2)}, s[{sL2E}:{sL2E+1}], {vr(g0,2)}")
for i in range(64):
    e(f"v_exp_f32 v{vS+i}, v{vS+i}")
for i in range(32):
    bf16_round_pair(vP + i, vS + 2*i, vS + 2*i + 1)
for c in range(4):
    e(f"v_pk_add_f32 {vr(g0+2*c,2)}, {vr(vS+16*c,2)}, {vr(vS+16*c+2,2)}")
for i in range(2, 8):
    for c in range(4):
        e(f"v_pk_add_f32 {vr(g0+2*c,2)}, {vr(g0+2*c,2)}, {vr(vS+16*c+2*i,2)}")
e(f"v_pk_add_f32 {vr(g0,2)}, {vr(g0,2)}, {vr(g0+2,2)}"); e(f"v_pk_add_f32 {vr(g0+4,2)}, {vr(g0+4,2)}, {vr(g0+6,2)}")
e(f"v_pk_add_f32 {vr(g0,2)}, {vr(g0,2)}, {vr(g0+4,2)}"); e(f"v_add_f32 v{vL}, v{g0}, v{g0+1}")
swap_red(vL, g0, 32); swap_red(vL, g0, 16)
stamp()
for idx in range(11, 19):
    T = idx - 11; ab = (T & 1) * 32
    wait_tile(idx)
    read_wfrags(idx, ab, agpr=True)
    e("s_waitcnt lgkmcnt(0)")
    top_up(idx)
    for db in range(8):
        d = vr(vACC + 4*db, 4)
        e(f"v_mfma_f32_16x16x32_bf16 {d}, {ar(ab + 4*db, 4)}, {vr(vP + 4*T, 4)}, {'0' if T == 0 else d}")
    if T == CFG["H_AT"]: compute_h()
stamp()
OSLOT = (18 % 4) * 8192
e(f"v_and_b32 v{g0}, 7, v{N_}"); e(f"v_mul_u32_u24 v{g0}, 528, v{g0}"); e(f"v_lshl_add_u32 v{g0}, v{G_}, 4, v{g0}")
e(f"v_add_u32 v{g0}, s{sRING}, v{g0}")
e(f"s_lshl_b32 s{sT}, s{sW}, 6"); e(f"s_add_u32 s{sT}, s{sT}, {L_ML}")
e(f"v_lshlrev_b32 v{g0+1}, 3, v{N_}"); e(f"v_add_u32 v{g0+1}, s{sT}, v{g0+1}")
e(f"s_mov_b64 s[{sEX}:{sEX+1}], exec")
e("s_mov_b32 exec_lo, 0x00ff00ff"); e("s_mov_b32 exec_hi, 0x00ff00ff")
for db in range(8):
    e(f"ds_write_b128 v{g0}, {vr(vACC+4*db,4)} offset:{OSLOT + db*64}")
e("s_mov_b32 exec_lo, 0x000000ff"); e("s_mov_b32 exec_hi, 0")
e(f"ds_write_b64 v{g0+1}, {vr(vM,2)}")
e(f"s_mov_b64 exec, s[{sEX}:{sEX+1}]")
hd = g0 + 2
e(f"v_lshrrev_b32 v{hd}, 5, v{vLANE}"); e(f"s_lshl_b32 s{sT}, s{sW}, 1"); e(f"v_add_u32 v{hd}, s{sT}, v{hd}")
e(f"v_and_b32 v{g0+3}, 3, v{vLANE}"); e(f"v_lshlrev_b32 v{g0+3}, 4, v{g0+3}")
e(f"v_bfe_u32 v{g0+4}, v{vLANE}, 2, 1"); e(f"v_lshl_add_u32 v{g0+3}, v{g0+4}, 3, v{g0+3}")
e(f"v_bfe_u32 v{g0+4}, v{vLANE}, 3, 2"); e(f"v_lshl_add_u32 v{g0+3}, v{g0+4}, 6, v{g0+3}")
e(f"v_mul_u32_u24 v{g0+4}, 528, v{hd}"); e(f"v_add_u32 v{g0+3}, v{g0+3}, v{g0+4}")
e(f"v_lshlrev_b32 v{g0+4}, 3, v{hd}"); e(f"v_add_u32 v{g0+4}, {L_ML}, v{g0+4}")
e(f"v_and_b32 v{g0+5}, 31, v{vLANE}"); e(f"v_lshlrev_b32 v{g0+5}, 4, v{g0+5}")
e(f"v_lshl_add_u32 v{g0+5}, v{hd}, 10, v{g0+5}")
e(f"v_lshlrev_b32 v{g0+6}, 9, v{hd}"); e(f"v_mov_b32 v{g0+7}, {OOB}")
e(f"v_and_b32 v{g0+8}, 31, v{vLANE}"); e(f"v_cmp_eq_u32 vcc, 0, v{g0+8}")
e(f"v_cndmask_b32 v{g0+6}, v{g0+7}, v{g0+6}, vcc")
e("s_waitcnt lgkmcnt(0)")
if CFG["FINE2"]: stamp()
e("s_barrier")
if CFG["FINE2"]: stamp()
MO = vS
for w in range(4):
    e(f"ds_read_b64 {vr(MO+16+2*w,2)}, v{g0+4} offset:{w*64}")
e(f"v_add_u32 v{g0+7}, 0x8000, v{g0+3}"); e(f"v_add_u32 v{g0+8}, 0x10000, v{g0+3}"); e(f"v_add_u32 v{g0+9}, 0x18000, v{g0+3}")
for w, a in enumerate((g0+3, g0+7, g0+8, g0+9)):
    for hf in range(2):
        e(f"ds_read_b64 {vr(MO+4*w+2*hf,2)}, v{a} offset:{OSLOT + hf*256}")
e("s_waitcnt lgkmcnt(8)")
mm = MO + 24
e(f"v_max3_f32 v{mm}, v{MO+16}, v{MO+18}, v{MO+20}"); e(f"v_max_f32 v{mm}, v{mm}, v{MO+22}")
for w in range(4):
    e(f"v_sub_f32 v{MO+16+2*w}, v{MO+16+2*w}, v{mm}")
for w in range(4):
    e(f"v_exp_f32 v{MO+16+2*w}, v{MO+16+2*w}")
e(f"v_mul_f32 v{mm+2}, v{MO+16}, v{MO+17}")
for w in range(1, 4):
    e(f"v_fma_f32 v{mm+2}, v{MO+16+2*w}, v{MO+17+2*w}, v{mm+2}")
e(f"v_mov_b32 v{mm+1}, v{vTAG}"); e(f"v_mov_b32 v{mm+3}, v{vTAG}")
e("s_waitcnt lgkmcnt(0)")
og = MO + 28
for hf in range(2):
    for k in range(2):
        d = og + 4*hf + 2*k
        e(f"v_mul_f32 v{d}, v{MO+16}, v{MO+2*hf+k}")
        for w in range(1, 4):
            e(f"v_fma_f32 v{d}, v{MO+16+2*w}, v{MO+4*w+2*hf+k}, v{d}")
        e(f"v_mov_b32 v{d+1}, v{vTAG}")
for hf in range(2):
    off = f" offset:{512*hf}" if hf else ""
    e.vmem(f"buffer_store_dwordx4 {vr(og+4*hf,4)}, v{g0+5}, {srd('ws')}, s{sOP} offen{off}{ST}", "st")
e.vmem(f"buffer_store_dwordx4 {vr(mm,4)}, v{g0+6}, {srd('ws')}, s{sMLP} offen{ST}", "st")
stamp()
SUB = g0 + 10
e(f"v_lshrrev_b32 v{SUB}, 1, v{N_}")
e(f"s_lshr_b32 s{sT}, s{sR5}, 5")
e(f"s_lshr_b32 s{sT+1}, s{sR5}, 2"); e(f"s_and_b32 s{sT+1}, s{sT+1}, 7")
e(f"s_and_b32 s{sT+2}, s{sR5}, 3")
e(f"s_lshl_b32 s{sT+3}, s{sT}, 18"); e(f"s_lshl_b32 s{sT+4}, s{sW}, 16"); e(f"s_add_u32 s{sT+3}, s{sT+3}, s{sT+4}")
e(f"s_lshl_b32 s{sT+4}, s{sT+1}, 10"); e(f"s_add_u32 s{sT+3}, s{sT+3}, s{sT+4}")
e(f"s_lshl_b32 s{sT+4}, s{sT+2}, 8"); e(f"s_add_u32 s{sT+3}, s{sT+3}, s{sT+4}"); e(f"s_add_u32 s{sOC}, s{sT+3}, {WS_O}")
aOG, aML1, aML2 = g0 + 11, g0 + 12, g0 + 13
e(f"v_lshlrev_b32 v{aOG}, 20, v{B_}"); e(f"v_lshl_add_u32 v{aOG}, v{SUB}, 13, v{aOG}"); e(f"v_lshl_add_u32 v{aOG}, v{G_}, 4, v{aOG}")
e(f"s_lshl_b32 s{sT+3}, s{sT}, 12"); e(f"s_lshl_b32 s{sT+4}, s{sT+1}, 9"); e(f"s_add_u32 s{sT+3}, s{sT+3}, s{sT+4}")
e(f"s_add_u32 s{sT+5}, s{sT+3}, {WS_ML}")
e(f"s_lshl_b32 s{sT+4}, s{sW}, 7"); e(f"s_add_u32 s{sT+6}, s{sT+5}, s{sT+4}")
e(f"v_lshlrev_b32 v{aML2}, 14, v{B_}"); e(f"v_lshl_add_u32 v{aML2}, v{SUB}, 4, v{aML2}")
e(f"v_lshl_add_u32 v{aML1}, v{G_}, 7, v{aML2}")
OG = vS + 40
o_loads = [f"buffer_load_dwordx4 {vr(OG+4*q,4)}, v{aOG}, {srd('ws')}, s{sOC} offen offset:{64*q} sc1".replace(" offset:0 ", " ") for q in range(4)]
o_loads += [f"buffer_load_dwordx4 {vr(OG+16,4)}, v{aML1}, {srd('ws')}, s{sT+5} offen sc1",
            f"buffer_load_dwordx4 {vr(OG+20,4)}, v{aML2}, {srd('ws')}, s{sT+6} offen sc1"]
gather(o_loads, "og")
def publish_F(mat):
    F = vFR + 8
    e(f"s_mov_b64 s[{sEX}:{sEX+1}], exec")
    e("s_mov_b32 exec_lo, 0x00030003"); e("s_mov_b32 exec_hi, 0x00030003")
    for db in range(8):
        for r in range(4):
            e(f"v_mov_b32 v{F + 2*r}, v{vACC + 4*db + r}")
        if db < 7: e("s_lshl_b64 exec, exec, 2")
    e(f"s_mov_b64 exec, s[{sEX}:{sEX+1}]")
    for r in range(4): e(f"v_mov_b32 v{F + 2*r + 1}, v{vTAG}")
    e.vmem(f"buffer_store_dwordx4 {vr(F,4)}, v{aF}, {srd('ws')}, s{sFP} offen{ST}", "st")
    e.vmem(f"buffer_store_dwordx4 {vr(F+4,4)}, v{aF}, {srd('ws')}, s{sFP} offen offset:16{ST}", "st")
aF = vA + 5
e(f"v_lshlrev_b32 v{aF}, 20, v{B_}"); e(f"v_lshl_add_u32 v{aF}, v{SUB}, 14, v{aF}")
e(f"v_lshrrev_b32 v{g0}, 1, v{G_}"); e(f"v_lshl_add_u32 v{aF}, v{g0}, 13, v{aF}")
e(f"v_and_b32 v{g0}, 1, v{G_}"); e(f"v_lshl_add_u32 v{aF}, v{g0}, 5, v{aF}")
e(f"s_lshl_b32 s{sFP}, s{sHALF}, 19"); e(f"s_lshl_b32 s{sFC}, s{sW}, 17"); e(f"s_add_u32 s{sFP}, s{sFP}, s{sFC}")
e(f"s_lshl_b32 s{sFC}, s{sR5}, 6"); e(f"s_add_u32 s{sFP}, s{sFP}, s{sFC}"); e(f"s_add_u32 s{sFP}, s{sFP}, {WS_F + (2 << 20)}")
wait_tile(19)
read_wfrags(19, 64, agpr=True)
e("s_waitcnt lgkmcnt(0)")
for db in range(8):
    e(f"v_mfma_f32_16x16x32_bf16 {vr(vACC+4*db,4)}, {ar(64+4*db,4)}, {vr(vH,4)}, 0")
publish_F(1)
e(f"s_sub_u32 s{sFP}, s{sFP}, {2 << 20}")
wait_tile(20)
read_wfrags(20, 96, agpr=True)
stamp()
e.wait_vm("og")
if CFG["FINE2"]: stamp()
check_tags([OG+4*q+k for q in range(6) for k in (1, 3)], o_loads, g0, g0+1)
if CFG["FINE2"]: stamp()
gm = g0
e(f"v_mov_b32 v{gm}, v{OG+16}")
row_sum(gm, (2, 4, 8), "max_f32")
swap_red(gm, g0+1, 16, "max_f32"); swap_red(gm, g0+1, 32, "max_f32")
e(f"v_sub_f32 v{g0+2}, v{OG+16}, v{gm}"); e(f"v_sub_f32 v{g0+3}, v{OG+20}, v{gm}")
e(f"v_exp_f32 v{g0+2}, v{g0+2}"); e(f"v_exp_f32 v{g0+3}, v{g0+3}")
e(f"v_mul_f32 v{g0+2}, v{g0+2}, v{OG+18}")
row_sum(g0+2, (2, 4, 8))
swap_red(g0+2, g0+1, 16); swap_red(g0+2, g0+1, 32)
e(f"v_rcp_f32 v{g0+4}, v{g0+2}")
OV = vS
for q in range(4):
    for k in range(2):
        e(f"v_mul_f32 v{OV + 4*(q>>1) + 2*(q&1) + k}, v{g0+3}, v{OG + 4*q + 2*k}")
for i in range(8):
    row_sum(OV + i, (2, 4, 8))
e(f"s_lshl_b32 s{sT}, s{sW}, 8"); e(f"s_add_u32 s{sT}, s{sT}, {L_O2}")
e(f"v_lshlrev_b32 v{g0+5}, 7, v{B_}"); e(f"v_lshl_add_u32 v{g0+5}, v{G_}, 5, v{g0+5}")
e(f"v_add_u32 v{g0+6}, s{sT}, v{g0+5}"); e(f"v_add_u32 v{g0+5}, {L_O2}, v{g0+5}")
e(f"s_mov_b64 s[{sEX}:{sEX+1}], exec")
e("s_mov_b32 exec_lo, 0x00030003"); e("s_mov_b32 exec_hi, 0x00030003")
e(f"ds_write_b128 v{g0+6}, {vr(OV,4)}"); e(f"ds_write_b128 v{g0+6}, {vr(OV+4,4)} offset:16")
e(f"s_mov_b64 exec, s[{sEX}:{sEX+1}]")
e(f"v_fma_f32 v{g0+7}, -v{g0+2}, v{g0+4}, 1.0"); e(f"v_fma_f32 v{g0+4}, v{g0+7}, v{g0+4}, v{g0+4}")
e("s_waitcnt lgkmcnt(0)")
if CFG["FINE2"]: stamp()
e("s_barrier")
if CFG["FINE2"]: stamp()
for w in range(4):
    for u in range(2):
        e(f"ds_read_b128 {vr(OV + 8 + 8*w + 4*u, 4)}, v{g0+5} offset:{w*256 + u*16}")
e("s_waitcnt lgkmcnt(0)")
for i in range(0, 8, 2):
    a = OV + 8 + i
    e(f"v_pk_add_f32 {vr(a,2)}, {vr(a,2)}, {vr(a+8,2)}"); e(f"v_pk_add_f32 {vr(a+16,2)}, {vr(a+16,2)}, {vr(a+24,2)}")
    e(f"v_pk_add_f32 {vr(a,2)}, {vr(a,2)}, {vr(a+16,2)}")
for i in range(8):
    e(f"v_mul_f32 v{OV+8+i}, v{OV+8+i}, v{g0+4}")
for i in range(4):
    bf16_round_pair(vO + i, OV + 8 + 2*i, OV + 9 + 2*i)
for db in range(8):
    e(f"v_mfma_f32_16x16x32_bf16 {vr(vACC+4*db,4)}, {ar(96+4*db,4)}, {vr(vO,4)}, 0")
publish_F(0)
stamp()
if CFG["ACK"]:
    e.wait_all(); stamp()
e(f"s_and_b32 s{sT}, s2, 1"); e(f"s_lshr_b32 s{sT+1}, s2, 1")
e(f"s_lshl_b32 s{sT+2}, s{sT}, 20"); e(f"s_lshl_b32 s{sT+3}, s{sT+1}, 13"); e(f"s_add_u32 s{sT+2}, s{sT+2}, s{sT+3}")
e(f"s_add_u32 s{sT+2}, s{sT+2}, {WS_F}")
e(f"s_add_u32 s{sT+3}, s{sT+2}, 4096"); e(f"s_add_u32 s{sT+4}, s{sT+2}, {2 << 20}"); e(f"s_add_u32 s{sT+5}, s{sT+4}, 4096")
FG = vS
f_loads = [f"buffer_load_dwordx4 {vr(FG+4*i,4)}, v{aT16}, {srd('ws')}, s{sT+2+i} offen sc1" for i in (2, 3, 0, 1)]
gather(f_loads, "fg")
e(f"s_lshl_b32 s{sT}, s{sT}, 11"); e(f"s_lshl_b32 s{sT+1}, s{sT+1}, 4"); e(f"s_add_u32 s{sT}, s{sT}, s{sT+1}")
e(f"v_lshlrev_b32 v{g0+8}, 2, v{vLANE}")
e(f"v_and_b32 v{g0+8}, 12, v{g0+8}")
e.vmem(f"buffer_load_dword v{g0+9}, v{g0+8}, {srd('x')}, s{sT} offen", "xr")
e.wait_vm("fg", "xr")
if CFG["FINE2"]: stamp()
check_tags([FG+4*i+k for i in range(4) for k in (1, 3)], f_loads, g0, g0+1)
if CFG["FINE2"]: stamp()
FS = FG + 16
e(f"v_add_f32 v{FS}, v{FG}, v{FG+4}"); e(f"v_add_f32 v{FS+1}, v{FG+2}, v{FG+6}")
e(f"v_add_f32 v{FS+2}, v{FG+8}, v{FG+12}"); e(f"v_add_f32 v{FS+3}, v{FG+10}, v{FG+14}")
for i in range(4): row_sum(FS + i, (4, 8))
for i in range(4): swap_red(FS + i, g0 + i, 16)
for i in range(4): swap_red(FS + i, g0 + i, 32)
e(f"s_lshl_b32 s{sT+1}, s{sW}, 6"); e(f"s_add_u32 s{sT+1}, s{sT+1}, {L_FR}")
e(f"v_and_b32 v{g0}, 3, v{vLANE}"); e(f"v_lshlrev_b32 v{g0}, 4, v{g0}")
e(f"v_add_u32 v{g0+1}, s{sT+1}, v{g0}"); e(f"v_add_u32 v{g0}, {L_FR}, v{g0}")
e(f"ds_write_b128 v{g0+1}, {vr(FS,4)}")
e("s_waitcnt lgkmcnt(0)")
e("s_barrier")
e(f"s_cmp_lg_u32 s{sW}, 0")
e("s_cbranch_scc1 FIN")
for w in range(4):
    e(f"ds_read_b128 {vr(FS+4+4*w,4)}, v{g0} offset:{w*64}")
e("s_waitcnt lgkmcnt(0)")
for k in range(0, 4, 2):
    a = FS + 4 + k
    e(f"v_pk_add_f32 {vr(a,2)}, {vr(a,2)}, {vr(a+4,2)}"); e(f"v_pk_add_f32 {vr(a+8,2)}, {vr(a+8,2)}, {vr(a+12,2)}")
    e(f"v_pk_add_f32 {vr(a,2)}, {vr(a,2)}, {vr(a+8,2)}")
a = FS + 4
bf16_round_pair(g0+2, a, a+1); unpack(g0+2, a, a+1)
bf16_round_pair(g0+2, a+2, a+3); unpack(g0+2, a+2, a+3)
unpack(g0+9, g0+4, g0+5)
e(f"v_add_f32 v{a}, v{a}, v{g0+4}"); e(f"v_add_f32 v{a+1}, v{a+1}, v{g0+5}")
bf16_round_pair(g0+2, a, a+1); unpack(g0+2, a, a+1)
e(f"v_add_f32 v{a}, v{a}, v{a+2}"); e(f"v_add_f32 v{a+1}, v{a+1}, v{a+3}")
bf16_round_pair(g0+2, a, a+1)
e("s_mov_b32 exec_lo, 15"); e("s_mov_b32 exec_hi, 0")
e(f"buffer_store_dword v{g0+2}, v{g0+8}, {srd('out')}, s{sT} offen")
e("s_cmp_lg_u32 s2, 0")
e("s_cbranch_scc1 FIN")
e("s_mov_b32 exec_lo, 1")
e(f"v_mov_b32 v{g0+3}, 0")
e(f"buffer_store_dword v{vTAG}, v{g0+3}, {srd('ws')}, 0 offen{ST}")
e("FIN:")
if DBG:
    stamp()
    e("s_mov_b32 exec_lo, -1"); e("s_mov_b32 exec_hi, 0")
    e(f"s_lshl_b32 s{sT}, s2, 2"); e(f"s_add_u32 s{sT}, s{sT}, s{sW}"); e(f"s_lshl_b32 s{sT}, s{sT}, 7"); e(f"s_add_u32 s{sT}, s{sT}, {WS_DBG}")
    e(f"v_lshlrev_b32 v{g0+3}, 2, v{vLANE}")
    e(f"buffer_store_dword v255, v{g0+3}, {srd('ws')}, s{sT} offen")
e("s_endpgm")
body = list(e.lines)
for s in slow: body += s
body += ["DONE:", "s_endpgm", "CODE_END:"]
body, nn = fix_hazards(body)

hdr = open(os.path.join(os.path.dirname(os.path.abspath(__file__)), "..", "cdna_kernels", NAME + ".s.ref")).read().split("\n")
hdr = [l for l in hdr if l.startswith(";") and "@launch" not in l and "Override" not in l and "grid=ceil" not in l]
out = hdr + [f"; @launch grid=(256,1,1) block=(256,1,1) lds={LDS_BYTES}",
             '.amdgcn_target "amdgcn-amd-amdhsa--gfx950"', ".text", f".globl {NAME}_kernel", ".p2align 8",
             f".type {NAME}_kernel,@function", f"{NAME}_kernel:"]
out += [("" if l.endswith(":") else "    ") + l for l in body]
out += ['.section .rodata,"a"', ".p2align 6", f".amdhsa_kernel {NAME}_kernel",
        "  .amdhsa_next_free_vgpr 512", "  .amdhsa_next_free_sgpr 102", "  .amdhsa_accum_offset 256",
        "  .amdhsa_float_denorm_mode_32 3",
        "  .amdhsa_group_segment_fixed_size 0", "  .amdhsa_kernarg_size 96", "  .amdhsa_user_sgpr_count 2",
        "  .amdhsa_user_sgpr_kernarg_segment_ptr 1", "  .amdhsa_system_sgpr_workgroup_id_x 1", ".end_amdhsa_kernel", ""]
open(sys.argv[1], "w").write("\n".join(out))
print("lines", len(body), "nops inserted", nn, "lds", LDS_BYTES, "stamps", nstamp[0], file=sys.stderr)
```

```python
import sys, os
sys.path.insert(0, os.path.dirname(os.path.abspath(__file__)))
from asmlib import Emit, fix_hazards

NAME = "parallel_sum__gqa_block_cached__swiglu_ffn__decode"
CFG = dict(AHEAD=3, PRE=2, DBG=0, SPIN=30000, QR_AT=2, QR_CHK=5, H3_AT=4, QG_AT=7, FINE=0, PF=0, SPR=1, H_AT=2, FINE2=0, STM=1, ACK=0, TLB=0, ROT=0, LDM=0, QFLIP=0, FS=0, FT=0, JROT=0, LATE=0, VA=0, ORD=0, JG=0, JU=0)
for a in sys.argv[2:]:
    k, v = a.split("="); CFG[k] = int(v, 0)
AHEAD = CFG["AHEAD"]; DBG = CFG["DBG"]
ST = {0: " sc0 sc1", 1: " sc1", 2: " sc1 nt", 3: " sc0 sc1 nt"}[CFG["STM"]]

LD = {0: " sc1", 1: " sc0 sc1", 2: " sc1 nt", 3: " sc0 sc1 nt"}[CFG["LDM"]]
WS_QP, WS_QF, WS_GU, WS_O, WS_ML, WS_F = 0x10000, 0x90000, 0x100000, 0x200000, 0x400000, 0x480000
WS_DBG = 0x1000000
WS_NUM = 0x2000000 if DBG else 0x1000000
OOB = 0x7ff00000
MISC = 131072
L_R = MISC
L_Q = MISC + 12288
L_H = L_Q + 2176 + 128
L_ML = L_H + 4352
L_O2 = L_ML + 256
L_FR = L_O2 + 1024
LDS_BYTES = L_FR + 256
LDS_BYTES = (LDS_BYTES + 1023) // 1024 * 1024
sW, sGRP, sHI, sR5, sHALF = 3, 4, 5, 6, 7
SRD = dict(K=8, V=12, wq=16, wg=20, wu=24, wo=28, wd=32, ws=36, x=40, out=44)
sTAG, sRING, sKV, sSO = 48, 49, 50, 51
sWQ, sWG, sWO = 86, 87, 88
sWU, sJG, sJU = 62, 63, 99
sT = 90
sSCALE = 64
sL2E = 66
sMASK = 68
sCNT = 69
sEX = 70
sQP, sQPR, sQF, sQFR, sGUP, sGUC, sOP, sMLP, sOC, sFP, sFC = 72, 73, 74, 75, 76, 77, 78, 79, 80, 81, 82
sSEL, sCK, sM24 = 52, 56, 58
sSTAMP = 84
vTID, vLANE = 0, 1
vKD, vVD, vKR, vTR = 2, 6, 8, 12
vWQD, vWGD, vWOD = 20, 22, 24
vXN, vH, vO = 26, 30, 34
vTAG = 38
vQ = 40
vA = 56
vS, vP, vACC, vFR, vT = 64, 128, 160, 192, 224

e = Emit()
slow = []
nstamp = [0]
def stamp():
    if DBG:
        e(f"s_memrealtime s[{sSTAMP}:{sSTAMP+1}]")
        e("s_waitcnt lgkmcnt(0)")
        e(f"v_writelane_b32 v255, s{sSTAMP}, {nstamp[0]}")
        nstamp[0] += 1
def srd(n): return f"s[{SRD[n]}:{SRD[n]+3}]"
def vr(a, n=1): return f"v{a}" if n == 1 else f"v[{a}:{a+n-1}]"
def ar(a, n=1): return f"a{a}" if n == 1 else f"a[{a}:{a+n-1}]"

TILES = ["wq", "wg", "wu"] + [f"K{i}" for i in range(8)] + [f"V{i}" for i in range(8)] + ["wd", "wo"]
issued = [0]
LIM = [{0: 20, 1: 19, 2: 18, 3: 18, 4: 18}[CFG["LATE"]]]
def issue_tile(idx):
    t = TILES[idx]; slot = idx % 4; tag = ("tile", idx)
    if t[0] in "KV":
        n = int(t[1]); rs = srd(t[0])
        for h in range(2):
            e(f"s_add_u32 m0, s{sRING}, {slot*8192 + h*4096}")
            e(f"s_add_u32 s{sSO}, s{sKV}, {n*32768 + h*4096}")
            for jj in range(4):
                v = vKD + jj if t[0] == "K" else vVD + (jj & 1)
                off = f" offset:{jj*1024}" if jj else ""
                e.vmem(f"buffer_load_dwordx4 v{v}, {rs}, s{sSO} offen{off} nt lds", tag)
    else:
        pitch, vb, sb = {"wq": (8192, vWQD, sWQ), "wg": (7168, vWGD, sWG), "wu": (7168, vWGD, sWU),
                         "wo": (2048, vWOD, sWO), "wd": (2048, vWOD, sWO)}[t]
        for p in range(4):
            e(f"s_add_u32 m0, s{sRING}, {slot*8192 + p*2048}")
            e(f"s_add_u32 s{sSO}, s{sb}, {8*p*pitch}")
            e.vmem(f"buffer_load_dwordx4 v{vb}, {srd(t)}, s{sSO} offen nt lds", tag)
            e.vmem(f"buffer_load_dwordx4 v{vb+1}, {srd(t)}, s{sSO} offen offset:1024 nt lds", tag)
def issue_next():
    if issued[0] < len(TILES):
        issue_tile(issued[0]); issued[0] += 1
def top_up(idx, ahead=None):
    while issued[0] <= LIM[0] and issued[0] <= idx + (ahead or AHEAD): issue_next()
def wait_tile(idx):
    e.wait_vm(("tile", idx))

def read_wfrags(idx, dst, agpr=False):
    slot = idx % 4
    for db in range(8):
        for u in range(2):
            r = dst + db*4 + u*2
            d = ar(r, 2) if agpr else vr(r, 2)
            e(f"ds_read_b64_tr_b16 {d}, v{vTR+db} offset:{slot*8192 + u*4096}")

gid = [0]
def embed(dst, src):
    for i in range(4): e(f"v_perm_b32 v{dst+i}, v{src+i}, v{vTAG}, s{sSEL+i}")
def check_tags(tagregs, reissue, t0, t1, emb=(), tmp=None):
    def chk(out):
        rs = list(tagregs)
        for j, gr in enumerate(emb):
            out(f"v_perm_b32 v{tmp+j}, v{gr+1}, v{gr}, s{sCK}")
            out(f"v_perm_b32 v{t0}, v{gr+3}, v{gr+2}, s{sCK+1}")
            out(f"v_or_b32 v{tmp+j}, v{tmp+j}, v{t0}")
            rs.append(tmp + j)
        if len(rs) == 1:
            out(f"v_cmp_ne_u32 vcc, s{sTAG}, v{rs[0]}")
            return
        for op, t in (("min", t0), ("max", t1)):
            r = list(rs)
            cur = None
            while r:
                if cur is None:
                    if len(r) >= 3:
                        out(f"v_{op}3_u32 v{t}, v{r[0]}, v{r[1]}, v{r[2]}"); r = r[3:]
                    else:
                        out(f"v_{op}_u32 v{t}, v{r[0]}, v{r[1]}"); r = r[2:]
                    cur = t
                elif len(r) >= 2:
                    out(f"v_{op}3_u32 v{t}, v{t}, v{r[0]}, v{r[1]}"); r = r[2:]
                else:
                    out(f"v_{op}_u32 v{t}, v{t}, v{r[0]}"); r = r[1:]
        out(f"v_xor_b32 v{t0}, s{sTAG}, v{t0}")
        out(f"v_xor_b32 v{t1}, s{sTAG}, v{t1}")
        out(f"v_or_b32 v{t0}, v{t0}, v{t1}")
        out(f"v_cmp_ne_u32 vcc, 0, v{t0}")
    g = gid[0]; gid[0] += 1
    chk(e)
    e(f"s_cbranch_vccnz SLOW{g}")
    e(f"BACK{g}:")
    s = []
    s.append(f"SLOW{g}:")
    s.append(f"s_mov_b32 s{sCNT}, {CFG['SPIN']}")
    s.append(f"LOOP{g}:")
    s.append("s_mov_b64 exec, vcc")
    s += reissue
    s.append("s_waitcnt vmcnt(0)")
    chk(s.append)
    s.append(f"s_cbranch_vccz OUT{g}")
    s.append(f"s_sub_u32 s{sCNT}, s{sCNT}, 1")
    s.append(f"s_cmp_lg_u32 s{sCNT}, 0")
    s.append(f"s_cbranch_scc1 LOOP{g}")
    s.append(f"OUT{g}:")
    s.append("s_mov_b64 exec, -1")
    if DBG:
        s.append(f"s_sub_u32 s{sCNT}, {CFG['SPIN'] + 1}, s{sCNT}")
        s.append(f"v_writelane_b32 v255, s{sCNT}, {27 + g}")
    s.append(f"s_branch BACK{g}")
    slow.append(s)

def gather(loads, tag, ft=0):
    for l in loads:
        if CFG["FT"] & ft: l = l.replace(LD, "")
        e.vmem(l, tag)

def bf16_round_pair(dst_pk, a, b):
    e(f"v_cvt_pk_bf16_f32 v{dst_pk}, v{a}, v{b}")
def unpack(pk, lo, hi):
    e(f"v_and_b32 v{hi}, s{sMASK}, v{pk}")
    e(f"v_lshlrev_b32 v{lo}, 16, v{pk}")
def row_sum(reg, rors, op="add_f32"):
    for r in rors:
        e(f"v_{op}_dpp v{reg}, v{reg}, v{reg} row_ror:{r} row_mask:0xf bank_mask:0xf")
def swap_red(reg, tmp, which, op="add_f32"):
    e(f"v_mov_b32 v{tmp}, v{reg}")
    e(f"v_permlane{which}_swap_b32 v{reg}, v{tmp}")
    e(f"v_{op} v{reg}, v{reg}, v{tmp}")

e(f"s_cmp_ge_u32 s2, 256")
e(f"s_cbranch_scc1 DONE")
e("s_load_dwordx16 s[52:67], s[0:1], 0")
e("s_load_dwordx8 s[68:75], s[0:1], 64")
if DBG: e("v_mov_b32 v255, 0")
stamp()
e(f"v_and_b32 v{vLANE}, 63, v0")
e(f"v_lshrrev_b32 v{vT}, 6, v0")
e(f"v_readfirstlane_b32 s{sW}, v{vT}")
e(f"s_and_b32 s{sGRP}, s2, 7")
e(f"s_lshr_b32 s{sHI}, s2, 3")
e(f"s_and_b32 s{sHALF}, s{sHI}, 1")
e(f"s_lshr_b32 s{sR5}, s{sHI}, 1")
if CFG["ROT"] == 9:
    e(f"s_add_u32 s{sSO}, s{sGRP}, 1"); e(f"s_and_b32 s{sSO}, s{sSO}, 3"); e(f"s_lshl_b32 s{sSO}, s{sSO}, 1")
    e(f"s_lshr_b32 s{sR5+2}, s{sGRP}, 2"); e(f"s_add_u32 s{sSO}, s{sSO}, s{sR5+2}"); e(f"s_lshl_b32 s{sSO}, s{sSO}, 4")
elif CFG["ROT"]:
    e(f"s_add_u32 s{sSO}, s{sGRP}, {CFG['ROT']}"); e(f"s_and_b32 s{sSO}, s{sSO}, 7"); e(f"s_lshl_b32 s{sSO}, s{sSO}, 4")
else:
    e(f"s_lshl_b32 s{sSO}, s{sGRP}, 4")
e(f"s_add_u32 s{sR5}, s{sR5}, s{sSO}")
sJ = 89
e(f"s_add_u32 s{sJ}, s{sHI}, {CFG['JROT']}"); e(f"s_and_b32 s{sJ}, s{sJ}, 31")
N_, G_, B_ = vT, vT+1, vT+2
e(f"v_and_b32 v{N_}, 15, v{vLANE}")
e(f"v_lshrrev_b32 v{G_}, 4, v{vLANE}")
e(f"v_and_b32 v{B_}, 1, v{vLANE}")
e("s_waitcnt lgkmcnt(0)")
stamp()
ptr = dict(x=52, K=54, V=56, wq=58, wo=60, wg=64, wu=66, wd=68, out=70, ws=74)
size = dict(x=4096, K=64 << 20, V=64 << 20, wq=8 << 20, wo=8 << 20, wg=7 << 20, wu=7 << 20, wd=7 << 20, out=4096, ws=WS_NUM)
def mk_srd(*names):
    for n in names:
        b = SRD[n]
        e(f"s_mov_b64 s[{b}:{b+1}], s[{ptr[n]}:{ptr[n]+1}]")
        e(f"s_mov_b32 s{b+2}, {size[n]}")
        e(f"s_mov_b32 s{b+3}, 0x20000")
t = vT + 5
def wvoff(dst, pitch):
    for par in range(2):
        e(f"v_add_u32 v{t}, {4*par}, v{G_}")
        e(f"v_lshlrev_b32 v{t+1}, 1, v{t}")
        e(f"v_xor_b32 v{t+1}, v{t+1}, v{N_}")
        e(f"v_lshlrev_b32 v{t+1}, 4, v{t+1}")
        e(f"v_mul_u32_u24 v{t}, {pitch}, v{t}")
        e(f"v_add_u32 v{dst+par}, v{t}, v{t+1}")
        if par: e(f"v_subrev_u32 v{dst+par}, 1024, v{dst+par}")
mk_srd("x", "wq")
e(f"s_load_dword s{sTAG}, s[74:75], 0")
if CFG["TLB"] & 8:
    e(f"s_mul_i32 s98, s{sGRP}, {128*7168}")
    e(f"s_lshl_b32 s99, s{sGRP}, 23"); e(f"s_lshl_b32 s100, s{sHI}, 18"); e(f"s_add_u32 s99, s99, s100")
    e(f"s_load_dword s100, s[{ptr['wg']}:{ptr['wg']+1}], s98")
    e(f"s_load_dword s101, s[{ptr['K']}:{ptr['K']+1}], s99")
    e(f"s_load_dword s98, s[{ptr['wu']}:{ptr['wu']+1}], s98")
    if CFG["TLB"] & 16:
        e(f"s_load_dword s99, s[{ptr['V']}:{ptr['V']+1}], s99")
XS = vS
e(f"v_lshlrev_b32 v{vT+3}, 6, v{vLANE}")
for i in range(4):
    e.vmem(f"buffer_load_dwordx4 {vr(XS+4*i,4)}, v{vT+3}, {srd('x')}, 0 offen offset:{16*i}", "xs")
XF = vS + 16
e(f"s_lshl_b32 s{sT}, s{sGRP}, 7")
e(f"s_lshl_b32 s{sT+1}, s{sW}, 5")
e(f"s_add_u32 s{sT}, s{sT}, s{sT+1}")
e(f"s_lshl_b32 s{sT+2}, s{sT}, 1")
e(f"v_lshlrev_b32 v{vT+4}, 11, v{B_}")
e(f"v_lshl_add_u32 v{vT+4}, v{G_}, 3, v{vT+4}")
e.vmem(f"buffer_load_dwordx2 {vr(XF,2)}, v{vT+4}, {srd('x')}, s{sT+2} offen", "xf")
e.vmem(f"buffer_load_dwordx2 {vr(XF+2,2)}, v{vT+4}, {srd('x')}, s{sT+2} offen offset:32", "xf")
e(f"s_lshl_b32 s{sRING}, s{sW}, 15")
e(f"s_lshl_b32 s{sT+1}, s{sJ}, 8")
e(f"s_lshl_b32 s{sWQ}, s{sT}, 13")
e(f"s_add_u32 s{sWQ}, s{sWQ}, s{sT+1}")
wvoff(vWQD, 8192)
if CFG["FINE"]: stamp()
issue_next()
if CFG["FINE"]: stamp()
mk_srd("wg", "wu")
e(f"s_mul_i32 s{sWG}, s{sT}, 7168")
e(f"s_add_u32 s{sJG}, s{sJ}, {CFG['JG']}"); e(f"s_and_b32 s{sJG}, s{sJG}, 31")
e(f"s_add_u32 s{sJU}, s{sJ}, {CFG['JU']}"); e(f"s_and_b32 s{sJU}, s{sJU}, 31")
e(f"s_lshl_b32 s{sT+1}, s{sJU}, 8"); e(f"s_add_u32 s{sWU}, s{sWG}, s{sT+1}")
e(f"s_lshl_b32 s{sT+1}, s{sJG}, 8"); e(f"s_add_u32 s{sWG}, s{sWG}, s{sT+1}")
e(f"s_cmp_ge_u32 s{sJG}, 28")
e(f"s_cselect_b32 s{sWG}, 0, s{sWG}")
e(f"s_cselect_b32 s{SRD['wg']+2}, 0, s{SRD['wg']+2}")
e(f"s_cmp_ge_u32 s{sJU}, 28")
e(f"s_cselect_b32 s{sWU}, 0, s{sWU}")
e(f"s_cselect_b32 s{SRD['wu']+2}, 0, s{SRD['wu']+2}")
wvoff(vWGD, 7168)
for i in range(min(CFG["PRE"], 3) - 1): issue_next()
if CFG["FINE"]: stamp()
if CFG["PF"]:
    e(f"s_getpc_b64 s[{sT+4}:{sT+5}]")
    e("PCREF:")
    e(f"v_lshlrev_b32 v{vT+6}, 7, v0")
    e(f"v_min_u32 v{vT+6}, CODE_END-PCREF-4, v{vT+6}")
    e(f"v_mov_b32 v{vT+7}, s{sT+5}")
    e(f"v_add_co_u32 v{vT+6}, vcc, s{sT+4}, v{vT+6}")
    e(f"v_addc_co_u32 v{vT+7}, vcc, 0, v{vT+7}, vcc")
    e.vmem(f"global_load_dword v254, v[{vT+6}:{vT+7}], off", "pf")
mk_srd("ws", "K", "V", "wo", "wd", "out")
e(f"s_lshl_b32 s{sKV}, s{sGRP}, 23")
e(f"s_lshl_b32 s{sT}, s{sHI}, 18")
e(f"s_add_u32 s{sKV}, s{sKV}, s{sT}")
e(f"s_lshl_b32 s{sT}, s{sW}, 13")
e(f"s_add_u32 s{sKV}, s{sKV}, s{sT}")
e(f"s_lshl_b32 s{sWO}, s{sR5}, 16")
e(f"s_lshl_b32 s{sT}, s{sHALF}, 10")
e(f"s_add_u32 s{sWO}, s{sWO}, s{sT}")
e(f"s_lshl_b32 s{sT}, s{sW}, 8")
e(f"s_add_u32 s{sWO}, s{sWO}, s{sT}")
e(f"s_cmp_ge_u32 s{sR5}, 112")
e(f"s_cselect_b32 s{SRD['wd']+2}, 0, s{SRD['wd']+2}")
if CFG["TLB"]:
    e(f"v_mov_b32 v{t}, 0")
    if CFG["TLB"] & 1:
        e.vmem(f"buffer_load_dword v254, v{t}, {srd('K')}, s{sKV} offen nt", "pf")
        e.vmem(f"buffer_load_dword v254, v{t}, {srd('V')}, s{sKV} offen nt", "pf")
    if CFG["TLB"] & 2:
        e.vmem(f"buffer_load_dword v254, v{t}, {srd('wo')}, s{sWO} offen nt", "pf")
        e.vmem(f"buffer_load_dword v254, v{t}, {srd('wd')}, s{sWO} offen nt", "pf")
    if CFG["TLB"] & 4:
        e(f"v_min_u32 v{t+1}, 4, v{vLANE}")
        e(f"v_lshlrev_b32 v{t+1}, 21, v{t+1}")
        e(f"s_lshl_b32 s{sT}, s2, 2"); e(f"s_add_u32 s{sT}, s{sT}, s{sW}"); e(f"s_lshl_b32 s{sT}, s{sT}, 8")
        e.vmem(f"buffer_load_dword v254, v{t+1}, {srd('ws')}, s{sT} offen sc1", "pf")
for j in range(4):
    e(f"v_add_u32 v{t}, {4*j}, v{G_}")
    e(f"v_xor_b32 v{t}, v{t}, v{N_}")
    e(f"v_lshlrev_b32 v{t}, 4, v{t}")
    e(f"v_lshl_add_u32 v{vKD+j}, v{G_}, 8, v{t}")
for par in range(2):
    e(f"v_add_u32 v{t}, {4*par}, v{G_}")
    e(f"v_lshlrev_b32 v{t}, 1, v{t}")
    e(f"v_xor_b32 v{t}, v{t}, v{N_}")
    e(f"v_lshlrev_b32 v{t}, 4, v{t}")
    e(f"v_lshl_add_u32 v{vVD+par}, v{G_}, 8, v{t}")
for i in range(CFG["PRE"] - 3): issue_next()
wvoff(vWOD, 2048)
e(f"v_lshlrev_b32 v{t+1}, 8, v{N_}")
e(f"v_add_u32 v{t+1}, s{sRING}, v{t+1}")
for s in range(4):
    e(f"v_add_u32 v{t}, {4*s}, v{G_}")
    e(f"v_xor_b32 v{t}, v{t}, v{N_}")
    e(f"v_lshl_add_u32 v{vKR+s}, v{t}, 4, v{t+1}")
e(f"v_lshrrev_b32 v{t}, 2, v{vLANE}")
e(f"v_and_b32 v{t+1}, 7, v{t}")
e(f"v_lshlrev_b32 v{t}, 8, v{t}")
e(f"v_add_u32 v{t}, s{sRING}, v{t}")
e(f"v_and_b32 v{t+2}, 3, v{vLANE}")
e(f"v_lshlrev_b32 v{t+2}, 3, v{t+2}")
e(f"v_add_u32 v{t}, v{t}, v{t+2}")
for db in range(8):
    e(f"v_xor_b32 v{t+2}, {db}, v{t+1}")
    e(f"v_lshl_add_u32 v{vTR+db}, v{t+2}, 5, v{t}")
stamp()
e("s_waitcnt lgkmcnt(0)")
e(f"s_lshl_b32 s{sT}, s{sJ}, 14"); e(f"s_lshl_b32 s{sT+1}, s{sGRP}, 10")
e(f"s_add_u32 s{sT}, s{sT}, s{sT+1}"); e(f"s_add_u32 s{sQP}, s{sT}, {WS_QP}")
e(f"s_lshr_b32 s{sT}, s{sGRP}, 2"); e(f"s_and_b32 s{sT+1}, s{sGRP}, 3")
if CFG["QFLIP"]: e(f"s_xor_b32 s{sT}, s{sT}, 1")
e(f"s_lshl_b32 s{sT+2}, s{sT+1}, 2"); e(f"s_add_u32 s{sT+2}, s{sT+2}, s{sW}")
e(f"s_lshl_b32 s{sT+3}, s{sHI}, 14"); e(f"s_lshl_b32 s{sT+4}, s{sT}, 13")
e(f"s_add_u32 s{sT+3}, s{sT+3}, s{sT+4}"); e(f"s_lshl_b32 s{sT+4}, s{sT+2}, 6")
e(f"s_add_u32 s{sT+3}, s{sT+3}, s{sT+4}"); e(f"s_add_u32 s{sQPR}, s{sT+3}, {WS_QP}")
e(f"s_lshl_b32 s{sT+3}, s{sT}, 14"); e(f"s_lshl_b32 s{sT+4}, s{sHI}, 9")
e(f"s_add_u32 s{sT+3}, s{sT+3}, s{sT+4}"); e(f"s_lshl_b32 s{sT+4}, s{sT+2}, 5")
e(f"s_add_u32 s{sT+3}, s{sT+3}, s{sT+4}"); e(f"s_add_u32 s{sQF}, s{sT+3}, {WS_QF}")
e(f"s_lshl_b32 s{sT+3}, s{sGRP}, 12"); e(f"s_add_u32 s{sQFR}, s{sT+3}, {WS_QF}")
e(f"s_cmp_ge_u32 s{sW}, 2"); e(f"s_cselect_b32 s{sT+3}, s{sJU}, s{sJG}")
e(f"s_lshl_b32 s{sT+3}, s{sT+3}, 15"); e(f"s_lshl_b32 s{sT+4}, s{sGRP}, 9"); e(f"s_add_u32 s{sT+3}, s{sT+3}, s{sT+4}")
e(f"s_lshr_b32 s{sT+4}, s{sW}, 1"); e(f"s_lshl_b32 s{sT+4}, s{sT+4}, 12"); e(f"s_add_u32 s{sT+3}, s{sT+3}, s{sT+4}")
e(f"s_and_b32 s{sT+4}, s{sW}, 1"); e(f"s_lshl_b32 s{sT+4}, s{sT+4}, 8"); e(f"s_add_u32 s{sT+3}, s{sT+3}, s{sT+4}")
e(f"s_add_u32 s{sGUP}, s{sT+3}, {WS_GU}")
e(f"s_lshl_b32 s{sT+3}, s{sR5}, 13"); e(f"s_add_u32 s{sGUC}, s{sT+3}, {WS_GU}")
e(f"s_lshl_b32 s{sT+3}, s2, 0");
e(f"s_lshl_b32 s{sT+3}, s{sGRP}, 5"); e(f"s_add_u32 s{sT+3}, s{sT+3}, s{sHI}"); e(f"s_lshl_b32 s{sT+3}, s{sT+3}, 12")
e(f"s_add_u32 s{sOP}, s{sT+3}, {WS_O}")
e(f"s_lshl_b32 s{sT+3}, s{sGRP}, 12"); e(f"s_lshl_b32 s{sT+4}, s{sHI}, 4"); e(f"s_add_u32 s{sT+3}, s{sT+3}, s{sT+4}")
e(f"s_add_u32 s{sMLP}, s{sT+3}, {WS_ML}")
e(f"s_mov_b32 s{sSCALE}, 0x3db504f3"); e(f"s_mov_b32 s{sSCALE+1}, 0x3db504f3")
e(f"s_mov_b32 s{sL2E}, 0x3fb8aa3b"); e(f"s_mov_b32 s{sL2E+1}, 0x3fb8aa3b")
e(f"s_mov_b32 s{sMASK}, 0xffff0000")
for i in range(4): e(f"s_mov_b32 s{sSEL+i}, {hex(0x07060500 + i)}")
e(f"s_mov_b32 s{sCK}, 0x0c0c0400"); e(f"s_mov_b32 s{sCK+1}, 0x04000c0c"); e(f"s_mov_b32 s{sM24}, 0xffffff00")

e("s_waitcnt lgkmcnt(0)")
e(f"s_mul_i32 s{sTAG}, s{sTAG}, 1664525")
e(f"s_add_u32 s{sTAG}, s{sTAG}, 1013904223")
e(f"v_mov_b32 v{vTAG}, s{sTAG}")
stamp()
e.wait_vm("xs")
stamp()
X = vS + 24
for i in range(16):
    unpack(XS + i, X + 2*i, X + 2*i + 1)
acc = vT + 4
e(f"v_pk_add_f32 {vr(acc,2)}, {vr(X,2)}, {vr(X+2,2)}")
for i in range(2, 16):
    e(f"v_pk_add_f32 {vr(acc,2)}, {vr(acc,2)}, {vr(X+2*i,2)}")
e(f"v_add_f32 v{acc}, v{acc}, v{acc+1}")
row_sum(acc, (8, 4, 2, 1))
swap_red(acc, acc+1, 16)
e(f"v_mul_f32 v{acc}, 0x3a800000, v{acc}")
e(f"v_mov_b32 v{acc+1}, v{acc}")
va = acc + 2
for i in range(16):
    e(f"v_pk_add_f32 {vr(X+2*i,2)}, {vr(X+2*i,2)}, {vr(acc,2)} neg_lo:[0,1] neg_hi:[0,1]")
e(f"v_pk_mul_f32 {vr(va,2)}, {vr(X,2)}, {vr(X,2)}")
for i in range(1, 16):
    e(f"v_pk_fma_f32 {vr(va,2)}, {vr(X+2*i,2)}, {vr(X+2*i,2)}, {vr(va,2)}")
e(f"v_add_f32 v{va}, v{va}, v{va+1}")
row_sum(va, (8, 4, 2, 1))
swap_red(va, va+1, 16)
e(f"v_mul_f32 v{va}, 0x3a800000, v{va}")
bf16_round_pair(acc, acc, va)
unpack(acc, acc+1, va)
e(f"v_add_f32 v{va}, 0x3727c5ac, v{va}")
bf16_round_pair(va, va, va)
e(f"v_and_b32 v{va}, s{sMASK}, v{va}")
e(f"v_sqrt_f32 v{va}, v{va}")
bf16_round_pair(va, va, va)
e(f"v_and_b32 v{va}, s{sMASK}, v{va}")
e(f"v_readlane_b32 s{sT}, v{acc+1}, 0")
e(f"v_readlane_b32 s{sT+1}, v{acc+1}, 32")
e(f"v_readlane_b32 s{sT+2}, v{va}, 0")
e(f"v_readlane_b32 s{sT+3}, v{va}, 32")
e(f"v_cmp_eq_u32 vcc, 1, v{B_}")
e(f"v_mov_b32 v{acc}, s{sT}"); e(f"v_mov_b32 v{acc+1}, s{sT+1}")
e(f"v_cndmask_b32 v{acc}, v{acc}, v{acc+1}, vcc")
e(f"v_mov_b32 v{va}, s{sT+2}"); e(f"v_mov_b32 v{va+1}, s{sT+3}")
e(f"v_cndmask_b32 v{va}, v{va}, v{va+1}, vcc")
e(f"v_rcp_f32 v{va+1}, v{va}")
e.wait_vm("xf")
Y = X
for i in range(4):
    unpack(XF + i, Y + 2*i, Y + 2*i + 1)
for i in range(8):
    e(f"v_sub_f32 v{Y+i}, v{Y+i}, v{acc}")
for i in range(4):
    bf16_round_pair(XF + i, Y + 2*i, Y + 2*i + 1)
    unpack(XF + i, Y + 2*i, Y + 2*i + 1)
for i in range(8):
    e(f"v_mul_f32 v{Y+8+i}, v{Y+i}, v{va+1}")
    e(f"v_fma_f32 v{Y+i}, -v{Y+8+i}, v{va}, v{Y+i}")
    e(f"v_fma_f32 v{Y+i}, v{Y+i}, v{va+1}, v{Y+8+i}")
for i in range(4):
    bf16_round_pair(vXN + i, Y + 2*i, Y + 2*i + 1)
aRW, aT8, aLN16, aT16, aN272 = vA, vA+1, vA+2, vA+3, vA+4
e(f"s_lshl_b32 s{sT}, s{sW}, 10"); e(f"s_add_u32 s{sT}, s{sT}, {L_R}")
e(f"v_lshlrev_b32 v{aRW}, 9, v{B_}"); e(f"v_lshl_add_u32 v{aRW}, v{G_}, 4, v{aRW}"); e(f"v_add_u32 v{aRW}, s{sT}, v{aRW}")
e(f"v_lshlrev_b32 v{aT16}, 4, v0")
e(f"v_mul_u32_u24 v{aN272}, 272, v{N_}"); e(f"v_lshl_add_u32 v{aN272}, v{G_}, 4, v{aN272}")
stamp()

def proj_tile(idx, mat):
    wait_tile(idx)
    if idx == 0: stamp()
    read_wfrags(idx, vFR)
    e("s_waitcnt lgkmcnt(0)")
    return
def proj_mfma(mat, bfrag):
    for db in range(8):
        e(f"v_mfma_f32_16x16x32_bf16 {vr(vACC+4*db,4)}, {vr(vFR+4*db,4)}, {vr(bfrag,4)}, 0")
def proj_write(mat):
    e(f"s_mov_b64 s[{sEX}:{sEX+1}], exec")
    e("s_mov_b32 exec_lo, 0x00030003"); e("s_mov_b32 exec_hi, 0x00030003")
    for db in range(8):
        e(f"ds_write_b128 v{aRW}, {vr(vACC+4*db,4)} offset:{mat*4096 + db*64}")
    e(f"s_mov_b64 exec, s[{sEX}:{sEX+1}]")

proj_tile(0, 0)
proj_mfma(0, vXN)
proj_write(0)
e("s_waitcnt lgkmcnt(0)")
e("s_barrier")
g0 = vT + 8
e(f"v_lshlrev_b32 v{g0+7}, 2, v0")
for w in range(4):
    e(f"ds_read_b32 v{g0+w}, v{g0+7} offset:{L_R - MISC + w*1024 + 0}" if False else f"ds_read_b32 v{g0+w}, v{aT8} offset:{w*1024}") if False else None
e(f"v_add_u32 v{g0+7}, {L_R}, v{g0+7}")
for w in range(4):
    e(f"ds_read_b32 v{g0+w}, v{g0+7} offset:{w*1024}")
e(f"v_and_b32 v{g0+6}, 127, v0"); e(f"v_lshlrev_b32 v{g0+6}, 3, v{g0+6}")
e(f"v_lshrrev_b32 v{g0+5}, 7, v0"); e(f"v_lshl_add_u32 v{g0+6}, v{g0+5}, 13, v{g0+6}")
e("s_waitcnt lgkmcnt(0)")
e(f"v_add_f32 v{g0}, v{g0}, v{g0+1}"); e(f"v_add_f32 v{g0+2}, v{g0+2}, v{g0+3}")
e(f"v_add_f32 v{g0}, v{g0}, v{g0+2}"); e(f"v_mov_b32 v{g0+1}, v{vTAG}")
e.vmem(f"buffer_store_dwordx2 {vr(g0,2)}, v{g0+6}, {srd('ws')}, s{sQP} offen{ST}", "st")
stamp()
top_up(0)
proj_tile(1, 1)
top_up(1)
proj_mfma(1, vXN)
proj_write(1)
proj_tile(2, 2)
QR = vS
aQR = vA + 5
e(f"v_and_b32 v{aQR}, 31, v{vLANE}")
e(f"v_lshrrev_b32 v{g0}, 2, v{aQR}"); e(f"v_and_b32 v{aQR}, 3, v{aQR}")
e(f"v_lshlrev_b32 v{aQR}, 4, v{aQR}"); e(f"v_lshl_add_u32 v{aQR}, v{g0}, 10, v{aQR}")
qr_loads = [f"buffer_load_dwordx4 {vr(QR,4)}, v{aQR}, {srd('ws')}, s{sQPR} offen{LD}"]
gather(qr_loads, "qr")
top_up(2)
proj_mfma(2, vXN)
proj_write(2)
e("s_waitcnt lgkmcnt(0)")
e("s_barrier")
e(f"s_lshr_b32 s{sT}, s{sW}, 1"); e(f"s_lshl_b32 s{sT}, s{sT}, 12"); e(f"s_and_b32 s{sT+1}, s{sW}, 1")
e(f"s_lshl_b32 s{sT+1}, s{sT+1}, 9"); e(f"s_add_u32 s{sT}, s{sT}, s{sT+1}"); e(f"s_add_u32 s{sT}, s{sT}, {L_R + 4096}")
e(f"v_lshlrev_b32 v{g0+12}, 3, v{vLANE}"); e(f"v_add_u32 v{g0+12}, s{sT}, v{g0+12}")
for w in range(4):
    e(f"ds_read_b64 {vr(g0+2*w,2)}, v{g0+12} offset:{w*1024}")
e(f"v_lshlrev_b32 v{g0+13}, 4, v{N_}"); e(f"v_lshl_add_u32 v{g0+13}, v{G_}, 13, v{g0+13}")
e("s_waitcnt lgkmcnt(0)")
e(f"v_pk_add_f32 {vr(g0,2)}, {vr(g0,2)}, {vr(g0+2,2)}"); e(f"v_pk_add_f32 {vr(g0+4,2)}, {vr(g0+4,2)}, {vr(g0+6,2)}")
e(f"v_pk_add_f32 {vr(g0,2)}, {vr(g0,2)}, {vr(g0+4,2)}")
e(f"v_mov_b32 v{g0+2}, v{g0+1}"); e(f"v_mov_b32 v{g0+1}, v{vTAG}"); e(f"v_mov_b32 v{g0+3}, v{vTAG}")
e.vmem(f"buffer_store_dwordx4 {vr(g0,4)}, v{g0+13}, {srd('ws')}, s{sGUP} offen{ST}", "st")
stamp()

HG = vFR
def compute_h():
    e(f"v_add_u32 v{g0+1}, {L_H}, v{aN272}")
    for m in range(2):
        for u in range(2):
            e(f"ds_read_b128 {vr(HG + 8*m + 4*u, 4)}, v{g0+1} offset:{m*128 + u*64}")
    e("s_waitcnt lgkmcnt(0)")
    for i in range(16):
        row_sum(HG + i, (2, 4, 8))
    for i in range(8):
        bf16_round_pair(g0 + i, HG + 2*i, HG + 2*i + 1)
        unpack(g0 + i, HG + 2*i, HG + 2*i + 1)
    e(f"s_mov_b32 s{sT}, 0xbfb8aa3b")
    for i in range(8):
        e(f"v_mul_f32 v{g0+i}, s{sT}, v{HG+i}")
    for i in range(8):
        e(f"v_exp_f32 v{g0+i}, v{g0+i}")
    for i in range(8):
        e(f"v_add_f32 v{g0+i}, 1.0, v{g0+i}")
    for i in range(8):
        e(f"v_rcp_f32 v{g0+i}, v{g0+i}")
    for i in range(8):
        e(f"v_mul_f32 v{HG+i}, v{HG+i}, v{g0+i}")
    for i in range(4):
        bf16_round_pair(g0 + i, HG + 2*i, HG + 2*i + 1)
        unpack(g0 + i, HG + 2*i, HG + 2*i + 1)
    for i in range(8):
        e(f"v_mul_f32 v{HG+i}, v{HG+i}, v{HG+8+i}")
    for i in range(4):
        bf16_round_pair(vH + i, HG + 2*i, HG + 2*i + 1)

def k_tile(idx):
    n = idx - 3; slot = idx % 4
    wait_tile(idx)
    for u in range(2):
        for s in range(4):
            e(f"ds_read_b128 {ar(n*32 + u*16 + s*4, 4)}, v{vKR+s} offset:{slot*8192 + u*4096}")
    e("s_waitcnt lgkmcnt(0)")
GU = vS + 8
QG = vS + 16
gu_loads = [f"buffer_load_dwordx4 {vr(GU+4*m,4)}, v{aT16}, {srd('ws')}, s{sGUC} offen offset:{0}" .replace("offset:0", "") + (f" offset:{4095}" if False else "") for m in range(1)]
sGUC2 = 83
e(f"s_add_u32 s{sGUC2}, s{sGUC}, 4096")
gu_loads = [f"buffer_load_dwordx4 {vr(GU,4)}, v{aT16}, {srd('ws')}, s{sGUC} offen{LD}",
            f"buffer_load_dwordx4 {vr(GU+4,4)}, v{aT16}, {srd('ws')}, s{sGUC2} offen{LD}"]
qg_loads = [f"buffer_load_dwordx4 {vr(QG,4)}, v{aT16}, {srd('ws')}, s{sQFR} offen{LD}"]
for idx in range(3, 11):
    k_tile(idx)
    if idx == CFG["H3_AT"]: gather(gu_loads, "gu")
    if idx == CFG["QG_AT"]: gather(qg_loads, "qg")
    if idx != CFG["QR_CHK"]: top_up(idx)
    if idx == CFG["QR_CHK"]:
        e.wait_vm("qr")
        check_tags([QR+1, QR+3], qr_loads, g0, g0+1)
        for r in (QR, QR+2):
            row_sum(r, (4, 8))
            swap_red(r, g0, 16)
        e(f"v_cvt_pk_bf16_f32 v{g0}, v{QR}, v{QR+2}")
        e(f"v_mov_b32 v{g0+1}, v{vTAG}")
        e(f"v_lshlrev_b32 v{g0+2}, 3, v{vLANE}"); e(f"v_mov_b32 v{g0+3}, {OOB}")
        e(f"v_cmp_gt_u32 vcc, 4, v{vLANE}")
        e(f"v_cndmask_b32 v{g0+2}, v{g0+3}, v{g0+2}, vcc")
        e.vmem(f"buffer_store_dwordx2 {vr(g0,2)}, v{g0+2}, {srd('ws')}, s{sQF} offen{ST}", "st")
        stamp()
        top_up(idx)
stamp()
e.wait_vm("gu", "qg")
check_tags([GU+1, GU+3, GU+5, GU+7, QG+1, QG+3], gu_loads + qg_loads, g0, g0+1)
e(f"v_lshrrev_b32 v{g0}, 5, v0"); e(f"v_mul_u32_u24 v{g0}, 272, v{g0}"); e(f"v_and_b32 v{g0+1}, 31, v0")
e(f"v_lshl_add_u32 v{g0}, v{g0+1}, 3, v{g0}"); e(f"v_add_u32 v{g0}, {L_Q}, v{g0}")
e(f"v_mov_b32 v{QG+1}, v{QG+2}")
e(f"ds_write_b64 v{g0}, {vr(QG,2)}")
e(f"v_lshrrev_b32 v{g0+2}, 4, v0"); e(f"v_mul_u32_u24 v{g0+2}, 272, v{g0+2}")
e(f"v_lshl_add_u32 v{g0+2}, v{N_}, 3, v{g0+2}"); e(f"v_add_u32 v{g0+2}, {L_H}, v{g0+2}")
for m in range(2):
    e(f"v_mov_b32 v{GU+4*m+1}, v{GU+4*m+2}")
    e(f"ds_write_b64 v{g0+2}, {vr(GU+4*m,2)} offset:{128*m}")
e("s_waitcnt lgkmcnt(0)")
e("s_barrier")
e(f"v_and_b32 v{g0}, 7, v{N_}"); e(f"v_mul_u32_u24 v{g0}, 272, v{g0}"); e(f"v_lshl_add_u32 v{g0}, v{G_}, 4, v{g0}")
e(f"v_add_u32 v{g0}, {L_Q}, v{g0}")
for s in range(4):
    e(f"ds_read_b128 {vr(vQ+4*s,4)}, v{g0} offset:{s*64}")
e("s_waitcnt lgkmcnt(0)")
for s in range(4):
    for T in range(8):
        for u in range(2):
            d = vr(vS + T*8 + u*4, 4)
            e(f"v_mfma_f32_16x16x32_bf16 {d}, {ar(T*32 + u*16 + s*4, 4)}, {vr(vQ+4*s,4)}, {'0' if s == 0 else d}")
stamp()
if CFG["SPR"]: top_up(10, 3)
tp = vFR
for i in range(32):
    bf16_round_pair(tp + i, vS + 2*i, vS + 2*i + 1)
for i in range(32):
    unpack(tp + i, vS + 2*i, vS + 2*i + 1)
for i in range(32):
    e(f"v_pk_mul_f32 {vr(vS+2*i,2)}, {vr(vS+2*i,2)}, s[{sSCALE}:{sSCALE+1}]")
for i in range(32):
    bf16_round_pair(tp + i, vS + 2*i, vS + 2*i + 1)
for i in range(32):
    unpack(tp + i, vS + 2*i, vS + 2*i + 1)
vM, vL = vA + 6, vA + 7
for c in range(4):
    e(f"v_max3_f32 v{g0+c}, v{vS+16*c}, v{vS+16*c+1}, v{vS+16*c+2}")
for i in range(6):
    for c in range(4):
        e(f"v_max3_f32 v{g0+c}, v{g0+c}, v{vS+16*c+3+2*i}, v{vS+16*c+4+2*i}")
for c in range(4):
    e(f"v_max_f32 v{g0+c}, v{g0+c}, v{vS+16*c+15}")
e(f"v_max3_f32 v{g0}, v{g0}, v{g0+1}, v{g0+2}"); e(f"v_max_f32 v{vM}, v{g0}, v{g0+3}")
if CFG["SPR"]: top_up(10, 4)
swap_red(vM, g0, 32, "max_f32"); swap_red(vM, g0, 16, "max_f32")
e(f"v_mul_f32 v{vM}, s{sL2E}, v{vM}")
e(f"v_sub_f32 v{g0}, 0, v{vM}"); e(f"v_mov_b32 v{g0+1}, v{g0}")
for i in range(32):
    e(f"v_pk_fma_f32 {vr(vS+2*i,2)}, {vr(vS+2*i,2)}, s[{sL2E}:{sL2E+1}], {vr(g0,2)}")
for i in range(64):
    e(f"v_exp_f32 v{vS+i}, v{vS+i}")
for i in range(32):
    bf16_round_pair(vP + i, vS + 2*i, vS + 2*i + 1)
for c in range(4):
    e(f"v_pk_add_f32 {vr(g0+2*c,2)}, {vr(vS+16*c,2)}, {vr(vS+16*c+2,2)}")
for i in range(2, 8):
    for c in range(4):
        e(f"v_pk_add_f32 {vr(g0+2*c,2)}, {vr(g0+2*c,2)}, {vr(vS+16*c+2*i,2)}")
e(f"v_pk_add_f32 {vr(g0,2)}, {vr(g0,2)}, {vr(g0+2,2)}"); e(f"v_pk_add_f32 {vr(g0+4,2)}, {vr(g0+4,2)}, {vr(g0+6,2)}")
e(f"v_pk_add_f32 {vr(g0,2)}, {vr(g0,2)}, {vr(g0+4,2)}"); e(f"v_add_f32 v{vL}, v{g0}, v{g0+1}")
swap_red(vL, g0, 32); swap_red(vL, g0, 16)
stamp()
for idx in range(11, 19):
    T = idx - 11; ab = (T & 1) * 32
    wait_tile(idx)
    read_wfrags(idx, ab, agpr=True)
    e("s_waitcnt lgkmcnt(0)")
    if idx == 18 and CFG["LATE"] == 4: LIM[0] = 19
    top_up(idx, CFG["VA"] or None)
    for db in range(8):
        d = vr(vACC + 4*db, 4)
        e(f"v_mfma_f32_16x16x32_bf16 {d}, {ar(ab + 4*db, 4)}, {vr(vP + 4*T, 4)}, {'0' if T == 0 else d}")
    if T == CFG["H_AT"]: compute_h()
stamp()
OSLOT = (18 % 4) * 8192
e(f"v_and_b32 v{g0}, 7, v{N_}"); e(f"v_mul_u32_u24 v{g0}, 528, v{g0}"); e(f"v_lshl_add_u32 v{g0}, v{G_}, 4, v{g0}")
e(f"v_add_u32 v{g0}, s{sRING}, v{g0}")
e(f"s_lshl_b32 s{sT}, s{sW}, 6"); e(f"s_add_u32 s{sT}, s{sT}, {L_ML}")
e(f"v_lshlrev_b32 v{g0+1}, 3, v{N_}"); e(f"v_add_u32 v{g0+1}, s{sT}, v{g0+1}")
e(f"s_mov_b64 s[{sEX}:{sEX+1}], exec")
e("s_mov_b32 exec_lo, 0x00ff00ff"); e("s_mov_b32 exec_hi, 0x00ff00ff")
for db in range(8):
    e(f"ds_write_b128 v{g0}, {vr(vACC+4*db,4)} offset:{OSLOT + db*64}")
e("s_mov_b32 exec_lo, 0x000000ff"); e("s_mov_b32 exec_hi, 0")
e(f"ds_write_b64 v{g0+1}, {vr(vM,2)}")
e(f"s_mov_b64 exec, s[{sEX}:{sEX+1}]")
hd = g0 + 2
e(f"v_lshrrev_b32 v{hd}, 5, v{vLANE}"); e(f"s_lshl_b32 s{sT}, s{sW}, 1"); e(f"v_add_u32 v{hd}, s{sT}, v{hd}")
e(f"v_and_b32 v{g0+5}, 31, v{vLANE}"); e(f"v_lshlrev_b32 v{g0+5}, 4, v{g0+5}")
e(f"v_mul_u32_u24 v{g0+4}, 528, v{hd}"); e(f"v_add_u32 v{g0+3}, v{g0+5}, v{g0+4}")
e(f"v_lshlrev_b32 v{g0+4}, 3, v{hd}"); e(f"v_add_u32 v{g0+4}, {L_ML}, v{g0+4}")
e(f"v_lshl_add_u32 v{g0+5}, v{hd}, 9, v{g0+5}")
e(f"v_lshlrev_b32 v{g0+6}, 9, v{hd}"); e(f"v_mov_b32 v{g0+7}, {OOB}")
e(f"v_and_b32 v{g0+8}, 31, v{vLANE}"); e(f"v_cmp_eq_u32 vcc, 0, v{g0+8}")
e(f"v_cndmask_b32 v{g0+6}, v{g0+7}, v{g0+6}, vcc")
e(f"v_add_u32 v{g0+7}, 0x8000, v{g0+3}"); e(f"v_add_u32 v{g0+8}, 0x10000, v{g0+3}"); e(f"v_add_u32 v{g0+9}, 0x18000, v{g0+3}")
e("s_waitcnt lgkmcnt(0)")
if CFG["FINE2"]: stamp()
e("s_barrier")
if CFG["FINE2"]: stamp()
MO = vS
for w in range(4):
    e(f"ds_read_b64 {vr(MO+16+2*w,2)}, v{g0+4} offset:{w*64}")
for w, a in enumerate((g0+3, g0+7, g0+8, g0+9)):
    e(f"ds_read_b128 {vr(MO+4*w,4)}, v{a} offset:{OSLOT}")
e("s_waitcnt lgkmcnt(4)")
mm = MO + 24
e(f"v_max3_f32 v{mm}, v{MO+16}, v{MO+18}, v{MO+20}"); e(f"v_max_f32 v{mm}, v{mm}, v{MO+22}")
for w in range(4):
    e(f"v_sub_f32 v{MO+16+2*w}, v{MO+16+2*w}, v{mm}")
for w in range(4):
    e(f"v_exp_f32 v{MO+16+2*w}, v{MO+16+2*w}")
e(f"v_mul_f32 v{mm+2}, v{MO+16}, v{MO+17}")
for w in range(1, 4):
    e(f"v_fma_f32 v{mm+2}, v{MO+16+2*w}, v{MO+17+2*w}, v{mm+2}")
e(f"v_mov_b32 v{mm+1}, v{vTAG}"); e(f"v_mov_b32 v{mm+3}, v{vTAG}")
e("s_waitcnt lgkmcnt(0)")
og = MO + 28
for k in range(4):
    e(f"v_mul_f32 v{og+k}, v{MO+16}, v{MO+k}")
for w in range(1, 4):
    for k in range(4):
        e(f"v_fma_f32 v{og+k}, v{MO+16+2*w}, v{MO+4*w+k}, v{og+k}")
embed(og, og)
e.vmem(f"buffer_store_dwordx4 {vr(og,4)}, v{g0+5}, {srd('ws')}, s{sOP} offen{ST}", "st")
e.vmem(f"buffer_store_dwordx4 {vr(mm,4)}, v{g0+6}, {srd('ws')}, s{sMLP} offen{ST}", "st")
if CFG["LATE"] in (1, 2, 4):
    LIM[0] = 20; top_up(18)
stamp()
SUB = g0 + 10
e(f"v_lshrrev_b32 v{SUB}, 1, v{N_}")
e(f"s_lshr_b32 s{sT}, s{sR5}, 5")
e(f"s_lshr_b32 s{sT+1}, s{sR5}, 2"); e(f"s_and_b32 s{sT+1}, s{sT+1}, 7")
e(f"s_and_b32 s{sT+2}, s{sR5}, 3")
e(f"s_lshl_b32 s{sT+3}, s{sT}, 17"); e(f"s_lshl_b32 s{sT+4}, s{sW}, 15"); e(f"s_add_u32 s{sT+3}, s{sT+3}, s{sT+4}")
e(f"s_lshl_b32 s{sT+4}, s{sT+1}, 9"); e(f"s_add_u32 s{sT+3}, s{sT+3}, s{sT+4}")
e(f"s_lshl_b32 s{sT+4}, s{sT+2}, 7"); e(f"s_add_u32 s{sT+3}, s{sT+3}, s{sT+4}"); e(f"s_add_u32 s{sOC}, s{sT+3}, {WS_O}")
aOG, aML1, aML2 = g0 + 11, g0 + 12, g0 + 13
e(f"v_lshlrev_b32 v{aOG}, 19, v{B_}"); e(f"v_lshl_add_u32 v{aOG}, v{SUB}, 12, v{aOG}"); e(f"v_lshl_add_u32 v{aOG}, v{G_}, 4, v{aOG}")
e(f"s_lshl_b32 s{sT+3}, s{sT}, 12"); e(f"s_lshl_b32 s{sT+4}, s{sT+1}, 9"); e(f"s_add_u32 s{sT+3}, s{sT+3}, s{sT+4}")
e(f"s_add_u32 s{sT+5}, s{sT+3}, {WS_ML}")
e(f"s_lshl_b32 s{sT+4}, s{sW}, 7"); e(f"s_add_u32 s{sT+6}, s{sT+5}, s{sT+4}")
e(f"v_lshlrev_b32 v{aML2}, 14, v{B_}"); e(f"v_lshl_add_u32 v{aML2}, v{SUB}, 4, v{aML2}")
e(f"v_lshl_add_u32 v{aML1}, v{G_}, 7, v{aML2}")
OG = vS + 40
o_loads = [f"buffer_load_dwordx4 {vr(OG+4*u,4)}, v{aOG}, {srd('ws')}, s{sOC} offen offset:{64*u}{LD}".replace(" offset:0", "") for u in range(2)]
o_loads += [f"buffer_load_dwordx4 {vr(OG+16,4)}, v{aML1}, {srd('ws')}, s{sT+5} offen{LD}",
            f"buffer_load_dwordx4 {vr(OG+20,4)}, v{aML2}, {srd('ws')}, s{sT+6} offen{LD}"]
if CFG["ACK"] & 2: e.wait_vm("st")
gather(o_loads, "og", 2)
if CFG["LATE"] == 3:
    LIM[0] = 20; top_up(18)
FA, FB = vFR + 8, vFR + 12
def select_F(F, vACC=vACC):
    e(f"s_mov_b64 s[{sEX}:{sEX+1}], exec")
    e("s_mov_b32 exec_lo, 0x00030003"); e("s_mov_b32 exec_hi, 0x00030003")
    for db in range(8):
        for r in range(4):
            e(f"v_mov_b32 v{F + r}, v{vACC + 4*db + r}")
        if db < 7: e("s_lshl_b64 exec, exec, 2")
    e(f"s_mov_b64 exec, s[{sEX}:{sEX+1}]")
    embed(F, F)
aF = vA + 5
e(f"v_lshlrev_b32 v{aF}, 15, v{SUB}"); e(f"v_lshl_add_u32 v{aF}, v{B_}, 6, v{aF}"); e(f"v_lshl_add_u32 v{aF}, v{G_}, 4, v{aF}")
e(f"s_lshl_b32 s{sFP}, s{sHALF}, 20"); e(f"s_lshl_b32 s{sFC}, s{sW}, 18"); e(f"s_add_u32 s{sFP}, s{sFP}, s{sFC}")
e(f"s_lshl_b32 s{sFC}, s{sR5}, 8"); e(f"s_add_u32 s{sFP}, s{sFP}, s{sFC}"); e(f"s_add_u32 s{sFP}, s{sFP}, {WS_F}")
if not CFG["ORD"]:
    wait_tile(19)
    read_wfrags(19, 64, agpr=True)
    e("s_waitcnt lgkmcnt(0)")
    for db in range(8):
        e(f"v_mfma_f32_16x16x32_bf16 {vr(vACC+4*db,4)}, {ar(64+4*db,4)}, {vr(vH,4)}, 0")
    select_F(FB)
    wait_tile(20)
    read_wfrags(20, 96, agpr=True)
stamp()
e.wait_vm("og")
if CFG["FINE2"]: stamp()
check_tags([OG+16+k for k in (1, 3, 5, 7)], o_loads, g0, g0+1, emb=(OG, OG+4), tmp=g0+2)
if CFG["FINE2"]: stamp()
gm = g0
e(f"v_mov_b32 v{gm}, v{OG+16}")
row_sum(gm, (2, 4, 8), "max_f32")
swap_red(gm, g0+1, 16, "max_f32"); swap_red(gm, g0+1, 32, "max_f32")
e(f"v_sub_f32 v{g0+2}, v{OG+16}, v{gm}"); e(f"v_sub_f32 v{g0+3}, v{OG+20}, v{gm}")
e(f"v_exp_f32 v{g0+2}, v{g0+2}"); e(f"v_exp_f32 v{g0+3}, v{g0+3}")
for i in range(8): e(f"v_and_b32 v{OG+i}, s{sM24}, v{OG+i}")
e(f"v_mul_f32 v{g0+2}, v{g0+2}, v{OG+18}")
OV = vS
for i in range(8):
    e(f"v_mul_f32 v{OV + i}, v{g0+3}, v{OG + i}")
for r in (2, 4, 8):
    for i in range(8):
        row_sum(OV + i, (r,))
    row_sum(g0+2, (r,))
e(f"s_lshl_b32 s{sT}, s{sW}, 8"); e(f"s_add_u32 s{sT}, s{sT}, {L_O2}")
e(f"v_lshlrev_b32 v{g0+5}, 7, v{B_}"); e(f"v_lshl_add_u32 v{g0+5}, v{G_}, 5, v{g0+5}")
e(f"v_add_u32 v{g0+6}, s{sT}, v{g0+5}"); e(f"v_add_u32 v{g0+5}, {L_O2}, v{g0+5}")
e(f"s_mov_b64 s[{sEX}:{sEX+1}], exec")
e("s_mov_b32 exec_lo, 0x00030003"); e("s_mov_b32 exec_hi, 0x00030003")
e(f"ds_write_b128 v{g0+6}, {vr(OV,4)}"); e(f"ds_write_b128 v{g0+6}, {vr(OV+4,4)} offset:16")
e(f"s_mov_b64 exec, s[{sEX}:{sEX+1}]")
swap_red(g0+2, g0+1, 16); swap_red(g0+2, g0+1, 32)
e(f"v_rcp_f32 v{g0+4}, v{g0+2}")
e(f"v_fma_f32 v{g0+7}, -v{g0+2}, v{g0+4}, 1.0"); e(f"v_fma_f32 v{g0+4}, v{g0+7}, v{g0+4}, v{g0+4}")
e("s_waitcnt lgkmcnt(0)")
if CFG["FINE2"]: stamp()
e("s_barrier")
if CFG["FINE2"]: stamp()
for w in range(4):
    for u in range(2):
        e(f"ds_read_b128 {vr(OV + 8 + 8*w + 4*u, 4)}, v{g0+5} offset:{w*256 + u*16}")
e("s_waitcnt lgkmcnt(0)")
for i in range(0, 8, 2):
    a = OV + 8 + i
    e(f"v_pk_add_f32 {vr(a,2)}, {vr(a,2)}, {vr(a+8,2)}"); e(f"v_pk_add_f32 {vr(a+16,2)}, {vr(a+16,2)}, {vr(a+24,2)}")
    e(f"v_pk_add_f32 {vr(a,2)}, {vr(a,2)}, {vr(a+16,2)}")
for i in range(8):
    e(f"v_mul_f32 v{OV+8+i}, v{OV+8+i}, v{g0+4}")
for i in range(4):
    bf16_round_pair(vO + i, OV + 8 + 2*i, OV + 9 + 2*i)
if CFG["ORD"]:
    wait_tile(19)
    read_wfrags(19, 64, agpr=True)
    wait_tile(20)
    read_wfrags(20, 96, agpr=True)
    e("s_waitcnt lgkmcnt(0)")
    for db in range(8):
        e(f"v_mfma_f32_16x16x32_bf16 {vr(vP+4*db,4)}, {ar(64+4*db,4)}, {vr(vH,4)}, 0")
for db in range(8):
    e(f"v_mfma_f32_16x16x32_bf16 {vr(vACC+4*db,4)}, {ar(96+4*db,4)}, {vr(vO,4)}, 0")
if CFG["ORD"]: select_F(FB, vP)
select_F(FA)
e.vmem(f"buffer_store_dwordx4 {vr(FA,4)}, v{aF}, {srd('ws')}, s{sFP} offen{ST}", "st")
e.vmem(f"buffer_store_dwordx4 {vr(FB,4)}, v{aF}, {srd('ws')}, s{sFP} offen offset:128{ST}", "st")
stamp()
if CFG["ACK"] & 1:
    e.wait_all(); stamp()
e(f"s_and_b32 s{sT}, s2, 1"); e(f"s_lshr_b32 s{sT+1}, s2, 2"); e(f"s_bfe_u32 s{sT+4}, s2, {(1 << 16) | 1}")
e(f"s_lshl_b32 s{sT+2}, s{sT+1}, 15"); e(f"s_lshl_b32 s{sT+3}, s{sT}, 6"); e(f"s_add_u32 s{sT+2}, s{sT+2}, s{sT+3}")
e(f"s_lshl_b32 s{sT+3}, s{sT+4}, 5"); e(f"s_add_u32 s{sT+2}, s{sT+2}, s{sT+3}"); e(f"s_add_u32 s{sT+2}, s{sT+2}, {WS_F}")
aFG = g0 + 10
e(f"v_lshrrev_b32 v{aFG}, 1, v0"); e(f"v_lshlrev_b32 v{aFG}, 8, v{aFG}")
e(f"v_and_b32 v{g0+9}, 1, v0"); e(f"v_lshl_add_u32 v{aFG}, v{g0+9}, 4, v{aFG}")
FG = vS
f_loads = [f"buffer_load_dwordx4 {vr(FG,4)}, v{aFG}, {srd('ws')}, s{sT+2} offen{LD}",
           f"buffer_load_dwordx4 {vr(FG+4,4)}, v{aFG}, {srd('ws')}, s{sT+2} offen offset:128{LD}"]
gather(f_loads, "fg", 1)
e(f"s_lshl_b32 s{sT}, s{sT}, 11"); e(f"s_lshl_b32 s{sT+1}, s{sT+1}, 5"); e(f"s_add_u32 s{sT}, s{sT}, s{sT+1}")
e(f"s_lshl_b32 s{sT+4}, s{sT+4}, 4"); e(f"s_add_u32 s{sT}, s{sT}, s{sT+4}")
e(f"v_and_b32 v{g0+8}, 7, v{vLANE}"); e(f"v_bfrev_b32 v{g0+8}, v{g0+8}"); e(f"v_lshrrev_b32 v{g0+8}, 28, v{g0+8}")
e.vmem(f"buffer_load_ushort v{g0+9}, v{g0+8}, {srd('x')}, s{sT} offen", "xr")
e(f"s_lshl_b32 s{sT+1}, s{sW}, 6"); e(f"s_add_u32 s{sT+1}, s{sT+1}, {L_FR}")
e(f"v_and_b32 v{g0+11}, 1, v{vLANE}"); e(f"v_lshl_add_u32 v{g0+11}, v{G_}, 1, v{g0+11}")
e(f"v_lshlrev_b32 v{g0+11}, 3, v{g0+11}"); e(f"v_add_u32 v{g0+11}, s{sT+1}, v{g0+11}")
e(f"v_and_b32 v{g0+12}, 7, v{vLANE}"); e(f"v_lshlrev_b32 v{g0+12}, 3, v{g0+12}"); e(f"v_add_u32 v{g0+12}, {L_FR}, v{g0+12}")
e.wait_vm("fg", "xr")
if CFG["FINE2"]: stamp()
check_tags([], f_loads, g0, g0+1, emb=(FG, FG+4), tmp=g0+2)
if CFG["FINE2"]: stamp()
for i in range(8): e(f"v_and_b32 v{FG+i}, s{sM24}, v{FG+i}")
for i in range(0, 8, 2): e(f"v_permlane32_swap_b32 v{FG+i}, v{FG+i+1}")
for i in range(0, 8, 2): e(f"v_add_f32 v{FG+i}, v{FG+i}, v{FG+i+1}")
for i in (0, 4): e(f"v_permlane16_swap_b32 v{FG+i}, v{FG+i+2}")
e(f"v_add_f32 v{FG}, v{FG}, v{FG+2}"); e(f"v_add_f32 v{FG+1}, v{FG+4}, v{FG+6}")
for r in (2, 4, 8):
    row_sum(FG, (r,)); row_sum(FG+1, (r,))
e("s_mov_b32 exec_lo, 0x00030003"); e("s_mov_b32 exec_hi, 0x00030003")
e(f"ds_write_b64 v{g0+11}, {vr(FG,2)}")
e("s_waitcnt lgkmcnt(0)")
e("s_barrier")
e(f"s_cmp_lg_u32 s{sW}, 0")
e("s_cbranch_scc1 FIN")
e("s_mov_b32 exec_lo, 0xff"); e("s_mov_b32 exec_hi, 0")
for w in range(4):
    e(f"ds_read_b64 {vr(FG+2+2*w,2)}, v{g0+12} offset:{w*64}")
e(f"v_lshlrev_b32 v{g0+4}, 16, v{g0+9}")
e("s_waitcnt lgkmcnt(0)")
a = FG + 2
e(f"v_pk_add_f32 {vr(a,2)}, {vr(a,2)}, {vr(a+2,2)}"); e(f"v_pk_add_f32 {vr(a+4,2)}, {vr(a+4,2)}, {vr(a+6,2)}")
e(f"v_pk_add_f32 {vr(a,2)}, {vr(a,2)}, {vr(a+4,2)}")
bf16_round_pair(g0+2, a, a+1); unpack(g0+2, a, a+1)
e(f"v_add_f32 v{a}, v{a}, v{g0+4}")
bf16_round_pair(g0+2, a, a); e(f"v_lshlrev_b32 v{a}, 16, v{g0+2}")
e(f"v_add_f32 v{a}, v{a}, v{a+1}")
bf16_round_pair(g0+2, a, a)
e(f"buffer_store_short v{g0+2}, v{g0+8}, {srd('out')}, s{sT} offen")
e("s_cmp_lg_u32 s2, 0")
e("s_cbranch_scc1 FIN")
e("s_mov_b32 exec_lo, 1")
e(f"v_mov_b32 v{g0+3}, 0")
e(f"buffer_store_dword v{vTAG}, v{g0+3}, {srd('ws')}, 0 offen{ST}")
e("FIN:")
if DBG:
    stamp()
    e("s_mov_b32 exec_lo, -1"); e("s_mov_b32 exec_hi, 0")
    e(f"s_lshl_b32 s{sT}, s2, 2"); e(f"s_add_u32 s{sT}, s{sT}, s{sW}"); e(f"s_lshl_b32 s{sT}, s{sT}, 7"); e(f"s_add_u32 s{sT}, s{sT}, {WS_DBG}")
    e(f"v_lshlrev_b32 v{g0+3}, 2, v{vLANE}")
    e(f"buffer_store_dword v255, v{g0+3}, {srd('ws')}, s{sT} offen")
e("s_endpgm")
body = list(e.lines)
for s in slow: body += s
body += ["DONE:", "s_endpgm", "CODE_END:"]
body, nn = fix_hazards(body)

hdr = open(os.path.join(os.path.dirname(os.path.abspath(__file__)), "..", "cdna_kernels", NAME + ".s.ref")).read().split("\n")
hdr = [l for l in hdr if l.startswith(";") and "@launch" not in l and "Override" not in l and "grid=ceil" not in l]
out = hdr + [f"; @launch grid=(256,1,1) block=(256,1,1) lds={LDS_BYTES}",
             '.amdgcn_target "amdgcn-amd-amdhsa--gfx950"', ".text", f".globl {NAME}_kernel", ".p2align 8",
             f".type {NAME}_kernel,@function", f"{NAME}_kernel:"]
out += [("" if l.endswith(":") else "    ") + l for l in body]
out += ['.section .rodata,"a"', ".p2align 6", f".amdhsa_kernel {NAME}_kernel",
        "  .amdhsa_next_free_vgpr 512", "  .amdhsa_next_free_sgpr 102", "  .amdhsa_accum_offset 256",
        "  .amdhsa_float_denorm_mode_32 3",
        "  .amdhsa_group_segment_fixed_size 0", "  .amdhsa_kernarg_size 96", "  .amdhsa_user_sgpr_count 2",
        "  .amdhsa_user_sgpr_kernarg_segment_ptr 1", "  .amdhsa_system_sgpr_workgroup_id_x 1", ".end_amdhsa_kernel", ""]
open(sys.argv[1], "w").write("\n".join(out))
print("lines", len(body), "nops inserted", nn, "lds", LDS_BYTES, "stamps", nstamp[0], file=sys.stderr)
```

```python
import sys, os
sys.path.insert(0, os.path.dirname(os.path.abspath(__file__)))
from asmlib import Emit, fix_hazards

NAME = "parallel_sum__gqa_block_cached__swiglu_ffn__decode"
CFG = dict(AHEAD=3, PRE=2, DBG=0, SPIN=30000, QR_AT=2, QR_CHK=5, H3_AT=4, QG_AT=7, FINE=0, PF=0, SPR=1, H_AT=2, FINE2=0, STM=1, ACK=0, TLB=0, ROT=0, LDM=0, QFLIP=0, FS=0, FT=0, JROT=0, LATE=0, VA=0, ORD=0, JG=0, JU=0, GX=0, GS=0, HO=0, HS=0)
for a in sys.argv[2:]:
    k, v = a.split("="); CFG[k] = int(v, 0)
AHEAD = CFG["AHEAD"]; DBG = CFG["DBG"]
ST = {0: " sc0 sc1", 1: " sc1", 2: " sc1 nt", 3: " sc0 sc1 nt"}[CFG["STM"]]

LD = {0: " sc1", 1: " sc0 sc1", 2: " sc1 nt", 3: " sc0 sc1 nt"}[CFG["LDM"]]
WS_QP, WS_QF, WS_GU, WS_O, WS_ML, WS_F = 0x10000, 0x90000, 0x100000, 0x200000, 0x400000, 0x480000
WS_DBG = 0x1000000
WS_NUM = 0x2000000 if DBG else 0x1000000
OOB = 0x7ff00000
MISC = 131072
L_R = MISC
L_Q = MISC + 12288
L_H = L_Q + 2176 + 128
L_ML = L_H + 4352
L_O2 = L_ML + 256
L_FR = L_O2 + 1024
LDS_BYTES = L_FR + 256
LDS_BYTES = (LDS_BYTES + 1023) // 1024 * 1024
sW, sGRP, sHI, sR5, sHALF = 3, 4, 5, 6, 7
SRD = dict(K=8, V=12, wq=16, wg=20, wu=24, wo=28, wd=32, ws=36, x=40, out=44)
sTAG, sRING, sKV, sSO = 48, 49, 50, 51
sWQ, sWG, sWO = 86, 87, 88
sGG = 100
sWU, sJG, sJU = 62, 63, 99
sT = 90
sSCALE = 64
sL2E = 66
sMASK = 68
sCNT = 69
sEX = 70
sQP, sQPR, sQF, sQFR, sGUP, sGUC, sOP, sMLP, sOC, sFP, sFC = 72, 73, 74, 75, 76, 77, 78, 79, 80, 81, 82
sSEL, sCK, sM24 = 52, 56, 58
sSTAMP = 84
vTID, vLANE = 0, 1
vKD, vVD, vKR, vTR = 2, 6, 8, 12
vWQD, vWGD, vWOD = 20, 22, 24
vXN, vH, vO = 26, 30, 34
vTAG = 38
vQ = 40
vA = 56
vS, vP, vACC, vFR, vT = 64, 128, 160, 192, 224

e = Emit()
slow = []
nstamp = [0]
def stamp():
    if DBG:
        e(f"s_memrealtime s[{sSTAMP}:{sSTAMP+1}]")
        e("s_waitcnt lgkmcnt(0)")
        e(f"v_writelane_b32 v255, s{sSTAMP}, {nstamp[0]}")
        nstamp[0] += 1
def srd(n): return f"s[{SRD[n]}:{SRD[n]+3}]"
def vr(a, n=1): return f"v{a}" if n == 1 else f"v[{a}:{a+n-1}]"
def ar(a, n=1): return f"a{a}" if n == 1 else f"a[{a}:{a+n-1}]"

TILES = ["wq", "wg", "wu"] + [f"K{i}" for i in range(8)] + [f"V{i}" for i in range(8)] + ["wd", "wo"]
issued = [0]
LIM = [{0: 20, 1: 19, 2: 18, 3: 18, 4: 18}[CFG["LATE"]]]
def issue_tile(idx):
    t = TILES[idx]; slot = idx % 4; tag = ("tile", idx)
    if t[0] in "KV":
        n = int(t[1]); rs = srd(t[0])
        for h in range(2):
            e(f"s_add_u32 m0, s{sRING}, {slot*8192 + h*4096}")
            e(f"s_add_u32 s{sSO}, s{sKV}, {n*32768 + h*4096}")
            for jj in range(4):
                v = vKD + jj if t[0] == "K" else vVD + (jj & 1)
                off = f" offset:{jj*1024}" if jj else ""
                e.vmem(f"buffer_load_dwordx4 v{v}, {rs}, s{sSO} offen{off} nt lds", tag)
    else:
        pitch, vb, sb = {"wq": (8192, vWQD, sWQ), "wg": (7168, vWGD, sWG), "wu": (7168, vWGD, sWU),
                         "wo": (2048, vWOD, sWO), "wd": (2048, vWOD, sWO)}[t]
        for p in range(4):
            e(f"s_add_u32 m0, s{sRING}, {slot*8192 + p*2048}")
            e(f"s_add_u32 s{sSO}, s{sb}, {8*p*pitch}")
            e.vmem(f"buffer_load_dwordx4 v{vb}, {srd(t)}, s{sSO} offen nt lds", tag)
            e.vmem(f"buffer_load_dwordx4 v{vb+1}, {srd(t)}, s{sSO} offen offset:1024 nt lds", tag)
def issue_next():
    if issued[0] < len(TILES):
        issue_tile(issued[0]); issued[0] += 1
def top_up(idx, ahead=None):
    while issued[0] <= LIM[0] and issued[0] <= idx + (ahead or AHEAD): issue_next()
def wait_tile(idx):
    e.wait_vm(("tile", idx))

def read_wfrags(idx, dst, agpr=False):
    slot = idx % 4
    for db in range(8):
        for u in range(2):
            r = dst + db*4 + u*2
            d = ar(r, 2) if agpr else vr(r, 2)
            e(f"ds_read_b64_tr_b16 {d}, v{vTR+db} offset:{slot*8192 + u*4096}")

gid = [0]
def embed(dst, src):
    for i in range(4): e(f"v_perm_b32 v{dst+i}, v{src+i}, v{vTAG}, s{sSEL+i}")
def check_tags(tagregs, reissue, t0, t1, emb=(), tmp=None):
    def chk(out):
        rs = list(tagregs)
        for j, gr in enumerate(emb):
            out(f"v_perm_b32 v{tmp+j}, v{gr+1}, v{gr}, s{sCK}")
            out(f"v_perm_b32 v{t0}, v{gr+3}, v{gr+2}, s{sCK+1}")
            out(f"v_or_b32 v{tmp+j}, v{tmp+j}, v{t0}")
            rs.append(tmp + j)
        if len(rs) == 1:
            out(f"v_cmp_ne_u32 vcc, s{sTAG}, v{rs[0]}")
            return
        for op, t in (("min", t0), ("max", t1)):
            r = list(rs)
            cur = None
            while r:
                if cur is None:
                    if len(r) >= 3:
                        out(f"v_{op}3_u32 v{t}, v{r[0]}, v{r[1]}, v{r[2]}"); r = r[3:]
                    else:
                        out(f"v_{op}_u32 v{t}, v{r[0]}, v{r[1]}"); r = r[2:]
                    cur = t
                elif len(r) >= 2:
                    out(f"v_{op}3_u32 v{t}, v{t}, v{r[0]}, v{r[1]}"); r = r[2:]
                else:
                    out(f"v_{op}_u32 v{t}, v{t}, v{r[0]}"); r = r[1:]
        out(f"v_xor_b32 v{t0}, s{sTAG}, v{t0}")
        out(f"v_xor_b32 v{t1}, s{sTAG}, v{t1}")
        out(f"v_or_b32 v{t0}, v{t0}, v{t1}")
        out(f"v_cmp_ne_u32 vcc, 0, v{t0}")
    g = gid[0]; gid[0] += 1
    chk(e)
    e(f"s_cbranch_vccnz SLOW{g}")
    e(f"BACK{g}:")
    s = []
    s.append(f"SLOW{g}:")
    s.append(f"s_mov_b32 s{sCNT}, {CFG['SPIN']}")
    s.append(f"LOOP{g}:")
    s.append("s_mov_b64 exec, vcc")
    s += reissue
    s.append("s_waitcnt vmcnt(0)")
    chk(s.append)
    s.append(f"s_cbranch_vccz OUT{g}")
    s.append(f"s_sub_u32 s{sCNT}, s{sCNT}, 1")
    s.append(f"s_cmp_lg_u32 s{sCNT}, 0")
    s.append(f"s_cbranch_scc1 LOOP{g}")
    s.append(f"OUT{g}:")
    s.append("s_mov_b64 exec, -1")
    if DBG:
        s.append(f"s_sub_u32 s{sCNT}, {CFG['SPIN'] + 1}, s{sCNT}")
        s.append(f"v_writelane_b32 v255, s{sCNT}, {27 + g}")
    s.append(f"s_branch BACK{g}")
    slow.append(s)

def gather(loads, tag, ft=0):
    for l in loads:
        if CFG["FT"] & ft: l = l.replace(LD, "")
        e.vmem(l, tag)

def bf16_round_pair(dst_pk, a, b):
    e(f"v_cvt_pk_bf16_f32 v{dst_pk}, v{a}, v{b}")
def unpack(pk, lo, hi):
    e(f"v_and_b32 v{hi}, s{sMASK}, v{pk}")
    e(f"v_lshlrev_b32 v{lo}, 16, v{pk}")
def row_sum(reg, rors, op="add_f32"):
    for r in rors:
        e(f"v_{op}_dpp v{reg}, v{reg}, v{reg} row_ror:{r} row_mask:0xf bank_mask:0xf")
def swap_red(reg, tmp, which, op="add_f32"):
    e(f"v_mov_b32 v{tmp}, v{reg}")
    e(f"v_permlane{which}_swap_b32 v{reg}, v{tmp}")
    e(f"v_{op} v{reg}, v{reg}, v{tmp}")

e(f"s_cmp_ge_u32 s2, 256")
e(f"s_cbranch_scc1 DONE")
e("s_load_dwordx16 s[52:67], s[0:1], 0")
e("s_load_dwordx8 s[68:75], s[0:1], 64")
if DBG: e("v_mov_b32 v255, 0")
stamp()
e(f"v_and_b32 v{vLANE}, 63, v0")
e(f"v_lshrrev_b32 v{vT}, 6, v0")
e(f"v_readfirstlane_b32 s{sW}, v{vT}")
e(f"s_and_b32 s{sGRP}, s2, 7")
if CFG["GX"]: e(f"s_xor_b32 s{sGRP}, s{sGRP}, {CFG['GX']}")
e(f"s_lshr_b32 s{sHI}, s2, 3")
e(f"s_and_b32 s{sHALF}, s{sHI}, 1")
e(f"s_lshr_b32 s{sR5}, s{sHI}, 1")
if CFG["ROT"] == 9:
    e(f"s_add_u32 s{sSO}, s{sGRP}, 1"); e(f"s_and_b32 s{sSO}, s{sSO}, 3"); e(f"s_lshl_b32 s{sSO}, s{sSO}, 1")
    e(f"s_lshr_b32 s{sR5+2}, s{sGRP}, 2"); e(f"s_add_u32 s{sSO}, s{sSO}, s{sR5+2}"); e(f"s_lshl_b32 s{sSO}, s{sSO}, 4")
elif CFG["ROT"]:
    e(f"s_add_u32 s{sSO}, s{sGRP}, {CFG['ROT']}"); e(f"s_and_b32 s{sSO}, s{sSO}, 7"); e(f"s_lshl_b32 s{sSO}, s{sSO}, 4")
else:
    e(f"s_lshl_b32 s{sSO}, s{sGRP}, 4")
e(f"s_add_u32 s{sR5}, s{sR5}, s{sSO}")
sJ = 89
e(f"s_add_u32 s{sJ}, s{sHI}, {CFG['JROT']}"); e(f"s_and_b32 s{sJ}, s{sJ}, 31")
if CFG["GS"]:
    e(f"s_lshr_b32 s{sT}, s{sHI}, 2"); e(f"s_xor_b32 s{sT}, s{sT}, s{sGRP}")
    if CFG["GS"] == 2: e(f"s_xor_b32 s{sT}, s{sT}, 1")
    e(f"s_and_b32 s{sT}, s{sT}, 1")
    e(f"s_cmp_ge_u32 s{sHI}, 24"); e(f"s_cselect_b32 s{sT}, s{sT}, 0")
    e(f"s_xor_b32 s{sGG}, s{sGRP}, s{sT}")
    e(f"s_lshl_b32 s{sT}, s{sT}, 2"); e(f"s_xor_b32 s{sJU}, s{sHI}, s{sT}")
N_, G_, B_ = vT, vT+1, vT+2
e(f"v_and_b32 v{N_}, 15, v{vLANE}")
e(f"v_lshrrev_b32 v{G_}, 4, v{vLANE}")
e(f"v_and_b32 v{B_}, 1, v{vLANE}")
e("s_waitcnt lgkmcnt(0)")
stamp()
ptr = dict(x=52, K=54, V=56, wq=58, wo=60, wg=64, wu=66, wd=68, out=70, ws=74)
size = dict(x=4096, K=64 << 20, V=64 << 20, wq=8 << 20, wo=8 << 20, wg=7 << 20, wu=7 << 20, wd=7 << 20, out=4096, ws=WS_NUM)
def mk_srd(*names):
    for n in names:
        b = SRD[n]
        e(f"s_mov_b64 s[{b}:{b+1}], s[{ptr[n]}:{ptr[n]+1}]")
        e(f"s_mov_b32 s{b+2}, {size[n]}")
        e(f"s_mov_b32 s{b+3}, 0x20000")
t = vT + 5
def wvoff(dst, pitch):
    for par in range(2):
        e(f"v_add_u32 v{t}, {4*par}, v{G_}")
        e(f"v_lshlrev_b32 v{t+1}, 1, v{t}")
        e(f"v_xor_b32 v{t+1}, v{t+1}, v{N_}")
        e(f"v_lshlrev_b32 v{t+1}, 4, v{t+1}")
        e(f"v_mul_u32_u24 v{t}, {pitch}, v{t}")
        e(f"v_add_u32 v{dst+par}, v{t}, v{t+1}")
        if par: e(f"v_subrev_u32 v{dst+par}, 1024, v{dst+par}")
mk_srd("x", "wq")
e(f"s_load_dword s{sTAG}, s[74:75], 0")
if CFG["TLB"] & 8:
    e(f"s_mul_i32 s98, s{sGRP}, {128*7168}")
    e(f"s_lshl_b32 s99, s{sGRP}, 23"); e(f"s_lshl_b32 s100, s{sHI}, 18"); e(f"s_add_u32 s99, s99, s100")
    e(f"s_load_dword s100, s[{ptr['wg']}:{ptr['wg']+1}], s98")
    e(f"s_load_dword s101, s[{ptr['K']}:{ptr['K']+1}], s99")
    e(f"s_load_dword s98, s[{ptr['wu']}:{ptr['wu']+1}], s98")
    if CFG["TLB"] & 16:
        e(f"s_load_dword s99, s[{ptr['V']}:{ptr['V']+1}], s99")
XS = vS
e(f"v_lshlrev_b32 v{vT+3}, 6, v{vLANE}")
for i in range(4):
    e.vmem(f"buffer_load_dwordx4 {vr(XS+4*i,4)}, v{vT+3}, {srd('x')}, 0 offen offset:{16*i}", "xs")
XF = vS + 16
e(f"s_lshl_b32 s{sT}, s{sGRP}, 7")
e(f"s_lshl_b32 s{sT+1}, s{sW}, 5")
e(f"s_add_u32 s{sT}, s{sT}, s{sT+1}")
e(f"s_lshl_b32 s{sT+2}, s{sT}, 1")
e(f"v_lshlrev_b32 v{vT+4}, 11, v{B_}")
e(f"v_lshl_add_u32 v{vT+4}, v{G_}, 3, v{vT+4}")
e.vmem(f"buffer_load_dwordx2 {vr(XF,2)}, v{vT+4}, {srd('x')}, s{sT+2} offen", "xf")
e.vmem(f"buffer_load_dwordx2 {vr(XF+2,2)}, v{vT+4}, {srd('x')}, s{sT+2} offen offset:32", "xf")
XF2 = vS + 20
if CFG["GS"]:
    e(f"s_lshl_b32 s{sT+3}, s{sGG}, 7"); e(f"s_add_u32 s{sT+3}, s{sT+3}, s{sT+1}")
    e(f"s_lshl_b32 s{sT+4}, s{sT+3}, 1")
    e.vmem(f"buffer_load_dwordx2 {vr(XF2,2)}, v{vT+4}, {srd('x')}, s{sT+4} offen", "xf")
    e.vmem(f"buffer_load_dwordx2 {vr(XF2+2,2)}, v{vT+4}, {srd('x')}, s{sT+4} offen offset:32", "xf")
e(f"s_lshl_b32 s{sRING}, s{sW}, 15")
e(f"s_lshl_b32 s{sT+1}, s{sJ}, 8")
e(f"s_lshl_b32 s{sWQ}, s{sT}, 13")
e(f"s_add_u32 s{sWQ}, s{sWQ}, s{sT+1}")
wvoff(vWQD, 8192)
if CFG["FINE"]: stamp()
issue_next()
if CFG["FINE"]: stamp()
mk_srd("wg", "wu")
e(f"s_mul_i32 s{sWG}, s{sT+3 if CFG['GS'] else sT}, 7168")
if CFG["GS"]:
    e(f"s_mov_b32 s{sJG}, s{sJU}")
else:
    e(f"s_add_u32 s{sJG}, s{sJ}, {CFG['JG']}"); e(f"s_and_b32 s{sJG}, s{sJG}, 31")
    e(f"s_add_u32 s{sJU}, s{sJ}, {CFG['JU']}"); e(f"s_and_b32 s{sJU}, s{sJU}, 31")
e(f"s_lshl_b32 s{sT+1}, s{sJU}, 8"); e(f"s_add_u32 s{sWU}, s{sWG}, s{sT+1}")
e(f"s_lshl_b32 s{sT+1}, s{sJG}, 8"); e(f"s_add_u32 s{sWG}, s{sWG}, s{sT+1}")
e(f"s_cmp_ge_u32 s{sJG}, 28")
e(f"s_cselect_b32 s{sWG}, 0, s{sWG}")
e(f"s_cselect_b32 s{SRD['wg']+2}, 0, s{SRD['wg']+2}")
e(f"s_cmp_ge_u32 s{sJU}, 28")
e(f"s_cselect_b32 s{sWU}, 0, s{sWU}")
e(f"s_cselect_b32 s{SRD['wu']+2}, 0, s{SRD['wu']+2}")
wvoff(vWGD, 7168)
for i in range(min(CFG["PRE"], 3) - 1): issue_next()
if CFG["FINE"]: stamp()
if CFG["PF"]:
    e(f"s_getpc_b64 s[{sT+4}:{sT+5}]")
    e("PCREF:")
    e(f"v_lshlrev_b32 v{vT+6}, 7, v0")
    e(f"v_min_u32 v{vT+6}, CODE_END-PCREF-4, v{vT+6}")
    e(f"v_mov_b32 v{vT+7}, s{sT+5}")
    e(f"v_add_co_u32 v{vT+6}, vcc, s{sT+4}, v{vT+6}")
    e(f"v_addc_co_u32 v{vT+7}, vcc, 0, v{vT+7}, vcc")
    e.vmem(f"global_load_dword v254, v[{vT+6}:{vT+7}], off", "pf")
mk_srd("ws", "K", "V", "wo", "wd", "out")
e(f"s_lshl_b32 s{sKV}, s{sGRP}, 23")
e(f"s_lshl_b32 s{sT}, s{sHI}, 18")
e(f"s_add_u32 s{sKV}, s{sKV}, s{sT}")
e(f"s_lshl_b32 s{sT}, s{sW}, 13")
e(f"s_add_u32 s{sKV}, s{sKV}, s{sT}")
e(f"s_lshl_b32 s{sWO}, s{sR5}, 16")
e(f"s_lshl_b32 s{sT}, s{sHALF}, 10")
e(f"s_add_u32 s{sWO}, s{sWO}, s{sT}")
e(f"s_lshl_b32 s{sT}, s{sW}, 8")
e(f"s_add_u32 s{sWO}, s{sWO}, s{sT}")
e(f"s_cmp_ge_u32 s{sR5}, 112")
e(f"s_cselect_b32 s{SRD['wd']+2}, 0, s{SRD['wd']+2}")
if CFG["TLB"]:
    e(f"v_mov_b32 v{t}, 0")
    if CFG["TLB"] & 1:
        e.vmem(f"buffer_load_dword v254, v{t}, {srd('K')}, s{sKV} offen nt", "pf")
        e.vmem(f"buffer_load_dword v254, v{t}, {srd('V')}, s{sKV} offen nt", "pf")
    if CFG["TLB"] & 2:
        e.vmem(f"buffer_load_dword v254, v{t}, {srd('wo')}, s{sWO} offen nt", "pf")
        e.vmem(f"buffer_load_dword v254, v{t}, {srd('wd')}, s{sWO} offen nt", "pf")
    if CFG["TLB"] & 4:
        e(f"v_min_u32 v{t+1}, 4, v{vLANE}")
        e(f"v_lshlrev_b32 v{t+1}, 21, v{t+1}")
        e(f"s_lshl_b32 s{sT}, s2, 2"); e(f"s_add_u32 s{sT}, s{sT}, s{sW}"); e(f"s_lshl_b32 s{sT}, s{sT}, 8")
        e.vmem(f"buffer_load_dword v254, v{t+1}, {srd('ws')}, s{sT} offen sc1", "pf")
for j in range(4):
    e(f"v_add_u32 v{t}, {4*j}, v{G_}")
    e(f"v_xor_b32 v{t}, v{t}, v{N_}")
    e(f"v_lshlrev_b32 v{t}, 4, v{t}")
    e(f"v_lshl_add_u32 v{vKD+j}, v{G_}, 8, v{t}")
for par in range(2):
    e(f"v_add_u32 v{t}, {4*par}, v{G_}")
    e(f"v_lshlrev_b32 v{t}, 1, v{t}")
    e(f"v_xor_b32 v{t}, v{t}, v{N_}")
    e(f"v_lshlrev_b32 v{t}, 4, v{t}")
    e(f"v_lshl_add_u32 v{vVD+par}, v{G_}, 8, v{t}")
for i in range(CFG["PRE"] - 3): issue_next()
wvoff(vWOD, 2048)
e(f"v_lshlrev_b32 v{t+1}, 8, v{N_}")
e(f"v_add_u32 v{t+1}, s{sRING}, v{t+1}")
for s in range(4):
    e(f"v_add_u32 v{t}, {4*s}, v{G_}")
    e(f"v_xor_b32 v{t}, v{t}, v{N_}")
    e(f"v_lshl_add_u32 v{vKR+s}, v{t}, 4, v{t+1}")
e(f"v_lshrrev_b32 v{t}, 2, v{vLANE}")
e(f"v_and_b32 v{t+1}, 7, v{t}")
e(f"v_lshlrev_b32 v{t}, 8, v{t}")
e(f"v_add_u32 v{t}, s{sRING}, v{t}")
e(f"v_and_b32 v{t+2}, 3, v{vLANE}")
e(f"v_lshlrev_b32 v{t+2}, 3, v{t+2}")
e(f"v_add_u32 v{t}, v{t}, v{t+2}")
for db in range(8):
    e(f"v_xor_b32 v{t+2}, {db}, v{t+1}")
    e(f"v_lshl_add_u32 v{vTR+db}, v{t+2}, 5, v{t}")
stamp()
e("s_waitcnt lgkmcnt(0)")
e(f"s_lshl_b32 s{sT}, s{sJ}, 14"); e(f"s_lshl_b32 s{sT+1}, s{sGRP}, 10")
e(f"s_add_u32 s{sT}, s{sT}, s{sT+1}"); e(f"s_add_u32 s{sQP}, s{sT}, {WS_QP}")
e(f"s_lshr_b32 s{sT}, s{sGRP}, 2"); e(f"s_and_b32 s{sT+1}, s{sGRP}, 3")
if CFG["QFLIP"]: e(f"s_xor_b32 s{sT}, s{sT}, 1")
e(f"s_lshl_b32 s{sT+2}, s{sT+1}, 2"); e(f"s_add_u32 s{sT+2}, s{sT+2}, s{sW}")
e(f"s_lshl_b32 s{sT+3}, s{sHI}, 14"); e(f"s_lshl_b32 s{sT+4}, s{sT}, 13")
e(f"s_add_u32 s{sT+3}, s{sT+3}, s{sT+4}"); e(f"s_lshl_b32 s{sT+4}, s{sT+2}, 6")
e(f"s_add_u32 s{sT+3}, s{sT+3}, s{sT+4}"); e(f"s_add_u32 s{sQPR}, s{sT+3}, {WS_QP}")
e(f"s_lshl_b32 s{sT+3}, s{sT}, 14"); e(f"s_lshl_b32 s{sT+4}, s{sHI}, 9")
e(f"s_add_u32 s{sT+3}, s{sT+3}, s{sT+4}"); e(f"s_lshl_b32 s{sT+4}, s{sT+2}, 5")
e(f"s_add_u32 s{sT+3}, s{sT+3}, s{sT+4}"); e(f"s_add_u32 s{sQF}, s{sT+3}, {WS_QF}")
e(f"s_lshl_b32 s{sT+3}, s{sGRP}, 12"); e(f"s_add_u32 s{sQFR}, s{sT+3}, {WS_QF}")
e(f"s_cmp_ge_u32 s{sW}, 2"); e(f"s_cselect_b32 s{sT+3}, s{sJU}, s{sJG}")
e(f"s_lshl_b32 s{sT+3}, s{sT+3}, 15"); e(f"s_lshl_b32 s{sT+4}, s{sGG if CFG['GS'] else sGRP}, 9"); e(f"s_add_u32 s{sT+3}, s{sT+3}, s{sT+4}")
e(f"s_lshr_b32 s{sT+4}, s{sW}, 1"); e(f"s_lshl_b32 s{sT+4}, s{sT+4}, 12"); e(f"s_add_u32 s{sT+3}, s{sT+3}, s{sT+4}")
e(f"s_and_b32 s{sT+4}, s{sW}, 1"); e(f"s_lshl_b32 s{sT+4}, s{sT+4}, 8"); e(f"s_add_u32 s{sT+3}, s{sT+3}, s{sT+4}")
e(f"s_add_u32 s{sGUP}, s{sT+3}, {WS_GU}")
e(f"s_lshl_b32 s{sT+3}, s{sR5}, 13"); e(f"s_add_u32 s{sGUC}, s{sT+3}, {WS_GU}")
e(f"s_lshl_b32 s{sT+3}, s2, 0");
e(f"s_lshl_b32 s{sT+3}, s{sGRP}, 5"); e(f"s_add_u32 s{sT+3}, s{sT+3}, s{sHI}"); e(f"s_lshl_b32 s{sT+3}, s{sT+3}, 12")
e(f"s_add_u32 s{sOP}, s{sT+3}, {WS_O}")
e(f"s_lshl_b32 s{sT+3}, s{sGRP}, 12"); e(f"s_lshl_b32 s{sT+4}, s{sHI}, 4"); e(f"s_add_u32 s{sT+3}, s{sT+3}, s{sT+4}")
e(f"s_add_u32 s{sMLP}, s{sT+3}, {WS_ML}")
e(f"s_mov_b32 s{sSCALE}, 0x3db504f3"); e(f"s_mov_b32 s{sSCALE+1}, 0x3db504f3")
e(f"s_mov_b32 s{sL2E}, 0x3fb8aa3b"); e(f"s_mov_b32 s{sL2E+1}, 0x3fb8aa3b")
e(f"s_mov_b32 s{sMASK}, 0xffff0000")
for i in range(4): e(f"s_mov_b32 s{sSEL+i}, {hex(0x07060500 + i)}")
e(f"s_mov_b32 s{sCK}, 0x0c0c0400"); e(f"s_mov_b32 s{sCK+1}, 0x04000c0c"); e(f"s_mov_b32 s{sM24}, 0xffffff00")

e("s_waitcnt lgkmcnt(0)")
e(f"s_mul_i32 s{sTAG}, s{sTAG}, 1664525")
e(f"s_add_u32 s{sTAG}, s{sTAG}, 1013904223")
e(f"v_mov_b32 v{vTAG}, s{sTAG}")
stamp()
e.wait_vm("xs")
stamp()
X = vS + 24
for i in range(16):
    unpack(XS + i, X + 2*i, X + 2*i + 1)
acc = vT + 4
e(f"v_pk_add_f32 {vr(acc,2)}, {vr(X,2)}, {vr(X+2,2)}")
for i in range(2, 16):
    e(f"v_pk_add_f32 {vr(acc,2)}, {vr(acc,2)}, {vr(X+2*i,2)}")
e(f"v_add_f32 v{acc}, v{acc}, v{acc+1}")
row_sum(acc, (8, 4, 2, 1))
swap_red(acc, acc+1, 16)
e(f"v_mul_f32 v{acc}, 0x3a800000, v{acc}")
e(f"v_mov_b32 v{acc+1}, v{acc}")
va = acc + 2
for i in range(16):
    e(f"v_pk_add_f32 {vr(X+2*i,2)}, {vr(X+2*i,2)}, {vr(acc,2)} neg_lo:[0,1] neg_hi:[0,1]")
e(f"v_pk_mul_f32 {vr(va,2)}, {vr(X,2)}, {vr(X,2)}")
for i in range(1, 16):
    e(f"v_pk_fma_f32 {vr(va,2)}, {vr(X+2*i,2)}, {vr(X+2*i,2)}, {vr(va,2)}")
e(f"v_add_f32 v{va}, v{va}, v{va+1}")
row_sum(va, (8, 4, 2, 1))
swap_red(va, va+1, 16)
e(f"v_mul_f32 v{va}, 0x3a800000, v{va}")
bf16_round_pair(acc, acc, va)
unpack(acc, acc+1, va)
e(f"v_add_f32 v{va}, 0x3727c5ac, v{va}")
bf16_round_pair(va, va, va)
e(f"v_and_b32 v{va}, s{sMASK}, v{va}")
e(f"v_sqrt_f32 v{va}, v{va}")
bf16_round_pair(va, va, va)
e(f"v_and_b32 v{va}, s{sMASK}, v{va}")
e(f"v_readlane_b32 s{sT}, v{acc+1}, 0")
e(f"v_readlane_b32 s{sT+1}, v{acc+1}, 32")
e(f"v_readlane_b32 s{sT+2}, v{va}, 0")
e(f"v_readlane_b32 s{sT+3}, v{va}, 32")
e(f"v_cmp_eq_u32 vcc, 1, v{B_}")
e(f"v_mov_b32 v{acc}, s{sT}"); e(f"v_mov_b32 v{acc+1}, s{sT+1}")
e(f"v_cndmask_b32 v{acc}, v{acc}, v{acc+1}, vcc")
e(f"v_mov_b32 v{va}, s{sT+2}"); e(f"v_mov_b32 v{va+1}, s{sT+3}")
e(f"v_cndmask_b32 v{va}, v{va}, v{va+1}, vcc")
e(f"v_rcp_f32 v{va+1}, v{va}")
e.wait_vm("xf")
Y = X
def norm_frag(XF, dst):
    for i in range(4):
        unpack(XF + i, Y + 2*i, Y + 2*i + 1)
    for i in range(8):
        e(f"v_sub_f32 v{Y+i}, v{Y+i}, v{acc}")
    for i in range(4):
        bf16_round_pair(XF + i, Y + 2*i, Y + 2*i + 1)
        unpack(XF + i, Y + 2*i, Y + 2*i + 1)
    for i in range(8):
        e(f"v_mul_f32 v{Y+8+i}, v{Y+i}, v{va+1}")
        e(f"v_fma_f32 v{Y+i}, -v{Y+8+i}, v{va}, v{Y+i}")
        e(f"v_fma_f32 v{Y+i}, v{Y+i}, v{va+1}, v{Y+8+i}")
    for i in range(4):
        bf16_round_pair(dst + i, Y + 2*i, Y + 2*i + 1)
norm_frag(XF, vXN)
vXG = vXN
if CFG["GS"]:
    vXG = vH
    norm_frag(XF2, vXG)
aRW, aT8, aLN16, aT16, aN272 = vA, vA+1, vA+2, vA+3, vA+4
e(f"s_lshl_b32 s{sT}, s{sW}, 10"); e(f"s_add_u32 s{sT}, s{sT}, {L_R}")
e(f"v_lshlrev_b32 v{aRW}, 9, v{B_}"); e(f"v_lshl_add_u32 v{aRW}, v{G_}, 4, v{aRW}"); e(f"v_add_u32 v{aRW}, s{sT}, v{aRW}")
e(f"v_lshlrev_b32 v{aT16}, 4, v0")
e(f"v_mul_u32_u24 v{aN272}, 272, v{N_}"); e(f"v_lshl_add_u32 v{aN272}, v{G_}, 4, v{aN272}")
stamp()

def proj_tile(idx, mat):
    wait_tile(idx)
    if idx == 0: stamp()
    read_wfrags(idx, vFR)
    e("s_waitcnt lgkmcnt(0)")
    return
def proj_mfma(mat, bfrag):
    for db in range(8):
        e(f"v_mfma_f32_16x16x32_bf16 {vr(vACC+4*db,4)}, {vr(vFR+4*db,4)}, {vr(bfrag,4)}, 0")
def proj_write(mat):
    e(f"s_mov_b64 s[{sEX}:{sEX+1}], exec")
    e("s_mov_b32 exec_lo, 0x00030003"); e("s_mov_b32 exec_hi, 0x00030003")
    for db in range(8):
        e(f"ds_write_b128 v{aRW}, {vr(vACC+4*db,4)} offset:{mat*4096 + db*64}")
    e(f"s_mov_b64 exec, s[{sEX}:{sEX+1}]")

proj_tile(0, 0)
proj_mfma(0, vXN)
proj_write(0)
e("s_waitcnt lgkmcnt(0)")
e("s_barrier")
g0 = vT + 8
e(f"v_lshlrev_b32 v{g0+7}, 2, v0")
for w in range(4):
    e(f"ds_read_b32 v{g0+w}, v{g0+7} offset:{L_R - MISC + w*1024 + 0}" if False else f"ds_read_b32 v{g0+w}, v{aT8} offset:{w*1024}") if False else None
e(f"v_add_u32 v{g0+7}, {L_R}, v{g0+7}")
for w in range(4):
    e(f"ds_read_b32 v{g0+w}, v{g0+7} offset:{w*1024}")
e(f"v_and_b32 v{g0+6}, 127, v0"); e(f"v_lshlrev_b32 v{g0+6}, 3, v{g0+6}")
e(f"v_lshrrev_b32 v{g0+5}, 7, v0"); e(f"v_lshl_add_u32 v{g0+6}, v{g0+5}, 13, v{g0+6}")
e("s_waitcnt lgkmcnt(0)")
e(f"v_add_f32 v{g0}, v{g0}, v{g0+1}"); e(f"v_add_f32 v{g0+2}, v{g0+2}, v{g0+3}")
e(f"v_add_f32 v{g0}, v{g0}, v{g0+2}"); e(f"v_mov_b32 v{g0+1}, v{vTAG}")
e.vmem(f"buffer_store_dwordx2 {vr(g0,2)}, v{g0+6}, {srd('ws')}, s{sQP} offen{ST}", "st")
stamp()
top_up(0)
proj_tile(1, 1)
top_up(1)
proj_mfma(1, vXG)
proj_write(1)
proj_tile(2, 2)
QR = vS
aQR = vA + 5
e(f"v_and_b32 v{aQR}, 31, v{vLANE}")
e(f"v_lshrrev_b32 v{g0}, 2, v{aQR}"); e(f"v_and_b32 v{aQR}, 3, v{aQR}")
e(f"v_lshlrev_b32 v{aQR}, 4, v{aQR}"); e(f"v_lshl_add_u32 v{aQR}, v{g0}, 10, v{aQR}")
qr_loads = [f"buffer_load_dwordx4 {vr(QR,4)}, v{aQR}, {srd('ws')}, s{sQPR} offen{LD}"]
gather(qr_loads, "qr")
top_up(2)
proj_mfma(2, vXG)
proj_write(2)
e("s_waitcnt lgkmcnt(0)")
e("s_barrier")
e(f"s_lshr_b32 s{sT}, s{sW}, 1"); e(f"s_lshl_b32 s{sT}, s{sT}, 12"); e(f"s_and_b32 s{sT+1}, s{sW}, 1")
e(f"s_lshl_b32 s{sT+1}, s{sT+1}, 9"); e(f"s_add_u32 s{sT}, s{sT}, s{sT+1}"); e(f"s_add_u32 s{sT}, s{sT}, {L_R + 4096}")
e(f"v_lshlrev_b32 v{g0+12}, 3, v{vLANE}"); e(f"v_add_u32 v{g0+12}, s{sT}, v{g0+12}")
for w in range(4):
    e(f"ds_read_b64 {vr(g0+2*w,2)}, v{g0+12} offset:{w*1024}")
e(f"v_lshlrev_b32 v{g0+13}, 4, v{N_}"); e(f"v_lshl_add_u32 v{g0+13}, v{G_}, 13, v{g0+13}")
e("s_waitcnt lgkmcnt(0)")
e(f"v_pk_add_f32 {vr(g0,2)}, {vr(g0,2)}, {vr(g0+2,2)}"); e(f"v_pk_add_f32 {vr(g0+4,2)}, {vr(g0+4,2)}, {vr(g0+6,2)}")
e(f"v_pk_add_f32 {vr(g0,2)}, {vr(g0,2)}, {vr(g0+4,2)}")
e(f"v_mov_b32 v{g0+2}, v{g0+1}"); e(f"v_mov_b32 v{g0+1}, v{vTAG}"); e(f"v_mov_b32 v{g0+3}, v{vTAG}")
e.vmem(f"buffer_store_dwordx4 {vr(g0,4)}, v{g0+13}, {srd('ws')}, s{sGUP} offen{ST}", "st")
stamp()

HG = vFR
def compute_h():
    e(f"v_add_u32 v{g0+1}, {L_H}, v{aN272}")
    for m in range(2):
        for u in range(2):
            e(f"ds_read_b128 {vr(HG + 8*m + 4*u, 4)}, v{g0+1} offset:{m*128 + u*64}")
    e("s_waitcnt lgkmcnt(0)")
    for i in range(16):
        row_sum(HG + i, (2, 4, 8))
    for i in range(8):
        bf16_round_pair(g0 + i, HG + 2*i, HG + 2*i + 1)
        unpack(g0 + i, HG + 2*i, HG + 2*i + 1)
    e(f"s_mov_b32 s{sT}, 0xbfb8aa3b")
    for i in range(8):
        e(f"v_mul_f32 v{g0+i}, s{sT}, v{HG+i}")
    for i in range(8):
        e(f"v_exp_f32 v{g0+i}, v{g0+i}")
    for i in range(8):
        e(f"v_add_f32 v{g0+i}, 1.0, v{g0+i}")
    for i in range(8):
        e(f"v_rcp_f32 v{g0+i}, v{g0+i}")
    for i in range(8):
        e(f"v_mul_f32 v{HG+i}, v{HG+i}, v{g0+i}")
    for i in range(4):
        bf16_round_pair(g0 + i, HG + 2*i, HG + 2*i + 1)
        unpack(g0 + i, HG + 2*i, HG + 2*i + 1)
    for i in range(8):
        e(f"v_mul_f32 v{HG+i}, v{HG+i}, v{HG+8+i}")
    for i in range(4):
        bf16_round_pair(vH + i, HG + 2*i, HG + 2*i + 1)

def k_tile(idx):
    n = idx - 3; slot = idx % 4
    wait_tile(idx)
    for u in range(2):
        for s in range(4):
            e(f"ds_read_b128 {ar(n*32 + u*16 + s*4, 4)}, v{vKR+s} offset:{slot*8192 + u*4096}")
    e("s_waitcnt lgkmcnt(0)")
GU = vS + 8
QG = vS + 16
gu_loads = [f"buffer_load_dwordx4 {vr(GU+4*m,4)}, v{aT16}, {srd('ws')}, s{sGUC} offen offset:{0}" .replace("offset:0", "") + (f" offset:{4095}" if False else "") for m in range(1)]
sGUC2 = 83
e(f"s_add_u32 s{sGUC2}, s{sGUC}, 4096")
gu_loads = [f"buffer_load_dwordx4 {vr(GU,4)}, v{aT16}, {srd('ws')}, s{sGUC} offen{LD}",
            f"buffer_load_dwordx4 {vr(GU+4,4)}, v{aT16}, {srd('ws')}, s{sGUC2} offen{LD}"]
qg_loads = [f"buffer_load_dwordx4 {vr(QG,4)}, v{aT16}, {srd('ws')}, s{sQFR} offen{LD}"]
HS = CFG["HS"]; vQH = vS + 32
def half_exec(h):
    if h == 0: e("s_mov_b32 exec_lo, 0x00ff00ff"); e("s_mov_b32 exec_hi, 0x00ff00ff")
    elif h == 1: e("s_not_b64 exec, exec")
    else: e("s_mov_b64 exec, -1")
for idx in range(3, 11):
    if idx == 10 and HS:
        for i in range(16): e(f"v_mov_b32 v{vQ+i}, 0"); e(f"v_mov_b32 v{vQH+i}, 0")
        for i in range(32): e(f"v_mov_b32 v{vP+i}, 0")
    k_tile(idx)
    if idx == CFG["H3_AT"]: gather(gu_loads, "gu")
    if idx == CFG["QG_AT"]: gather(qg_loads, "qg")
    if idx != CFG["QR_CHK"]: top_up(idx)
    if idx == CFG["QR_CHK"]:
        e.wait_vm("qr")
        check_tags([QR+1, QR+3], qr_loads, g0, g0+1)
        for r in (QR, QR+2):
            row_sum(r, (4, 8))
            swap_red(r, g0, 16)
        e(f"v_cvt_pk_bf16_f32 v{g0}, v{QR}, v{QR+2}")
        e(f"v_mov_b32 v{g0+1}, v{vTAG}")
        e(f"v_lshlrev_b32 v{g0+2}, 3, v{vLANE}"); e(f"v_mov_b32 v{g0+3}, {OOB}")
        e(f"v_cmp_gt_u32 vcc, 4, v{vLANE}")
        e(f"v_cndmask_b32 v{g0+2}, v{g0+3}, v{g0+2}, vcc")
        e.vmem(f"buffer_store_dwordx2 {vr(g0,2)}, v{g0+2}, {srd('ws')}, s{sQF} offen{ST}", "st")
        stamp()
        top_up(idx)
stamp()
if CFG["SPR"] == 3: top_up(10, 3)
e.wait_vm("gu", "qg")
check_tags([GU+1, GU+3, GU+5, GU+7, QG+1, QG+3], gu_loads + qg_loads, g0, g0+1)
e(f"v_lshrrev_b32 v{g0}, 5, v0"); e(f"v_mul_u32_u24 v{g0}, 272, v{g0}"); e(f"v_and_b32 v{g0+1}, 31, v0")
e(f"v_lshl_add_u32 v{g0}, v{g0+1}, 3, v{g0}"); e(f"v_add_u32 v{g0}, {L_Q}, v{g0}")
e(f"v_mov_b32 v{QG+1}, v{QG+2}")
e(f"ds_write_b64 v{g0}, {vr(QG,2)}")
e(f"v_lshrrev_b32 v{g0+2}, 4, v0"); e(f"v_mul_u32_u24 v{g0+2}, 272, v{g0+2}")
e(f"v_lshl_add_u32 v{g0+2}, v{N_}, 3, v{g0+2}"); e(f"v_add_u32 v{g0+2}, {L_H}, v{g0+2}")
for m in range(2):
    e(f"v_mov_b32 v{GU+4*m+1}, v{GU+4*m+2}")
    e(f"ds_write_b64 v{g0+2}, {vr(GU+4*m,2)} offset:{128*m}")
e("s_waitcnt lgkmcnt(0)")
e("s_barrier")
e(f"v_and_b32 v{g0}, 7, v{N_}"); e(f"v_mul_u32_u24 v{g0}, 272, v{g0}"); e(f"v_lshl_add_u32 v{g0}, v{G_}, 4, v{g0}")
e(f"v_add_u32 v{g0}, {L_Q}, v{g0}")
if HS:
    for h in range(2):
        half_exec(h)
        for s in range(4):
            e(f"ds_read_b128 {vr((vQH if h else vQ)+4*s,4)}, v{g0} offset:{s*64}")
    half_exec(2)
else:
    for s in range(4):
        e(f"ds_read_b128 {vr(vQ+4*s,4)}, v{g0} offset:{s*64}")
e("s_waitcnt lgkmcnt(0)")
if CFG["SPR"] == 2: top_up(10, 3)
for s in range(4):
    for T in range(8):
        for u in range(2):
            if HS:
                d = vr(vS + (T & 3)*8 + u*4, 4)
                e(f"v_mfma_f32_16x16x32_bf16 {d}, {ar(T*32 + u*16 + s*4, 4)}, {vr((vQH if T >= 4 else vQ)+4*s,4)}, {'0' if s == 0 and T < 4 else d}")
            else:
                d = vr(vS + T*8 + u*4, 4)
                e(f"v_mfma_f32_16x16x32_bf16 {d}, {ar(T*32 + u*16 + s*4, 4)}, {vr(vQ+4*s,4)}, {'0' if s == 0 else d}")
stamp()
if CFG["SPR"]: top_up(10, 3 if CFG["SPR"] == 1 else 4)
tp = vFR
NP = 16 if HS else 32
CH = NP // 2
for i in range(NP):
    bf16_round_pair(tp + i, vS + 2*i, vS + 2*i + 1)
for i in range(NP):
    unpack(tp + i, vS + 2*i, vS + 2*i + 1)
for i in range(NP):
    e(f"v_pk_mul_f32 {vr(vS+2*i,2)}, {vr(vS+2*i,2)}, s[{sSCALE}:{sSCALE+1}]")
for i in range(NP):
    bf16_round_pair(tp + i, vS + 2*i, vS + 2*i + 1)
for i in range(NP):
    unpack(tp + i, vS + 2*i, vS + 2*i + 1)
vM, vL = vA + 6, vA + 7
for c in range(4):
    e(f"v_max3_f32 v{g0+c}, v{vS+CH*c}, v{vS+CH*c+1}, v{vS+CH*c+2}")
for i in range((CH - 4) // 2):
    for c in range(4):
        e(f"v_max3_f32 v{g0+c}, v{g0+c}, v{vS+CH*c+3+2*i}, v{vS+CH*c+4+2*i}")
for c in range(4):
    e(f"v_max_f32 v{g0+c}, v{g0+c}, v{vS+CH*c+CH-1}")
e(f"v_max3_f32 v{g0}, v{g0}, v{g0+1}, v{g0+2}"); e(f"v_max_f32 v{vM}, v{g0}, v{g0+3}")
if CFG["SPR"]: top_up(10, 4)
swap_red(vM, g0, 32, "max_f32"); swap_red(vM, g0, 16, "max_f32")
if HS: row_sum(vM, (8,), "max_f32")
e(f"v_mul_f32 v{vM}, s{sL2E}, v{vM}")
e(f"v_sub_f32 v{g0}, 0, v{vM}"); e(f"v_mov_b32 v{g0+1}, v{g0}")
for i in range(NP):
    e(f"v_pk_fma_f32 {vr(vS+2*i,2)}, {vr(vS+2*i,2)}, s[{sL2E}:{sL2E+1}], {vr(g0,2)}")
for i in range(2*NP):
    e(f"v_exp_f32 v{vS+i}, v{vS+i}")
if HS:
    for h in range(2):
        half_exec(h)
        for i in range(NP):
            bf16_round_pair(vP + 16*h + i, vS + 2*i, vS + 2*i + 1)
    half_exec(2)
else:
    for i in range(32):
        bf16_round_pair(vP + i, vS + 2*i, vS + 2*i + 1)
for c in range(4):
    e(f"v_pk_add_f32 {vr(g0+2*c,2)}, {vr(vS+CH*c,2)}, {vr(vS+CH*c+2,2)}")
for i in range(2, CH // 2):
    for c in range(4):
        e(f"v_pk_add_f32 {vr(g0+2*c,2)}, {vr(g0+2*c,2)}, {vr(vS+CH*c+2*i,2)}")
e(f"v_pk_add_f32 {vr(g0,2)}, {vr(g0,2)}, {vr(g0+2,2)}"); e(f"v_pk_add_f32 {vr(g0+4,2)}, {vr(g0+4,2)}, {vr(g0+6,2)}")
e(f"v_pk_add_f32 {vr(g0,2)}, {vr(g0,2)}, {vr(g0+4,2)}"); e(f"v_add_f32 v{vL}, v{g0}, v{g0+1}")
swap_red(vL, g0, 32); swap_red(vL, g0, 16)
if HS: row_sum(vL, (8,))
stamp()
hd = g0 + 2
SUB = g0 + 10
aOG, aML1, aML2 = g0 + 11, g0 + 12, g0 + 13
aF = vA + 5
aFG = g0 + 10
def addr_merge1():
    e(f"v_and_b32 v{g0}, 7, v{N_}"); e(f"v_mul_u32_u24 v{g0}, 528, v{g0}"); e(f"v_lshl_add_u32 v{g0}, v{G_}, 4, v{g0}")
    e(f"v_add_u32 v{g0}, s{sRING}, v{g0}")
    e(f"s_lshl_b32 s{sT}, s{sW}, 6"); e(f"s_add_u32 s{sT}, s{sT}, {L_ML}")
    e(f"v_lshlrev_b32 v{g0+1}, 3, v{N_}"); e(f"v_add_u32 v{g0+1}, s{sT}, v{g0+1}")
def addr_merge2():
    e(f"v_lshrrev_b32 v{hd}, 5, v{vLANE}"); e(f"s_lshl_b32 s{sT}, s{sW}, 1"); e(f"v_add_u32 v{hd}, s{sT}, v{hd}")
    e(f"v_and_b32 v{g0+5}, 31, v{vLANE}"); e(f"v_lshlrev_b32 v{g0+5}, 4, v{g0+5}")
    e(f"v_mul_u32_u24 v{g0+4}, 528, v{hd}"); e(f"v_add_u32 v{g0+3}, v{g0+5}, v{g0+4}")
    e(f"v_lshlrev_b32 v{g0+4}, 3, v{hd}"); e(f"v_add_u32 v{g0+4}, {L_ML}, v{g0+4}")
    e(f"v_lshl_add_u32 v{g0+5}, v{hd}, 9, v{g0+5}")
    e(f"v_lshlrev_b32 v{g0+6}, 9, v{hd}"); e(f"v_mov_b32 v{g0+7}, {OOB}")
    e(f"v_and_b32 v{g0+8}, 31, v{vLANE}"); e(f"v_cmp_eq_u32 vcc, 0, v{g0+8}")
    e(f"v_cndmask_b32 v{g0+6}, v{g0+7}, v{g0+6}, vcc")
    e(f"v_add_u32 v{g0+7}, 0x8000, v{g0+3}"); e(f"v_add_u32 v{g0+8}, 0x10000, v{g0+3}"); e(f"v_add_u32 v{g0+9}, 0x18000, v{g0+3}")
def addr_gather():
    e(f"v_lshrrev_b32 v{SUB}, 1, v{N_}")
    e(f"s_lshr_b32 s{sT}, s{sR5}, 5")
    e(f"s_lshr_b32 s{sT+1}, s{sR5}, 2"); e(f"s_and_b32 s{sT+1}, s{sT+1}, 7")
    e(f"s_and_b32 s{sT+2}, s{sR5}, 3")
    e(f"s_lshl_b32 s{sT+3}, s{sT}, 17"); e(f"s_lshl_b32 s{sT+4}, s{sW}, 15"); e(f"s_add_u32 s{sT+3}, s{sT+3}, s{sT+4}")
    e(f"s_lshl_b32 s{sT+4}, s{sT+1}, 9"); e(f"s_add_u32 s{sT+3}, s{sT+3}, s{sT+4}")
    e(f"s_lshl_b32 s{sT+4}, s{sT+2}, 7"); e(f"s_add_u32 s{sT+3}, s{sT+3}, s{sT+4}"); e(f"s_add_u32 s{sOC}, s{sT+3}, {WS_O}")
    e(f"v_lshlrev_b32 v{aOG}, 19, v{B_}"); e(f"v_lshl_add_u32 v{aOG}, v{SUB}, 12, v{aOG}"); e(f"v_lshl_add_u32 v{aOG}, v{G_}, 4, v{aOG}")
    e(f"s_lshl_b32 s{sT+3}, s{sT}, 12"); e(f"s_lshl_b32 s{sT+4}, s{sT+1}, 9"); e(f"s_add_u32 s{sT+3}, s{sT+3}, s{sT+4}")
    e(f"s_add_u32 s{sT+5}, s{sT+3}, {WS_ML}")
    e(f"s_lshl_b32 s{sT+4}, s{sW}, 7"); e(f"s_add_u32 s{sT+6}, s{sT+5}, s{sT+4}")
    e(f"v_lshlrev_b32 v{aML2}, 14, v{B_}"); e(f"v_lshl_add_u32 v{aML2}, v{SUB}, 4, v{aML2}")
    e(f"v_lshl_add_u32 v{aML1}, v{G_}, 7, v{aML2}")
def addr_f():
    e(f"v_lshlrev_b32 v{aF}, 15, v{SUB}"); e(f"v_lshl_add_u32 v{aF}, v{B_}, 6, v{aF}"); e(f"v_lshl_add_u32 v{aF}, v{G_}, 4, v{aF}")
    e(f"s_lshl_b32 s{sFP}, s{sHALF}, 20"); e(f"s_lshl_b32 s{sFC}, s{sW}, 18"); e(f"s_add_u32 s{sFP}, s{sFP}, s{sFC}")
    e(f"s_lshl_b32 s{sFC}, s{sR5}, 8"); e(f"s_add_u32 s{sFP}, s{sFP}, s{sFC}"); e(f"s_add_u32 s{sFP}, s{sFP}, {WS_F}")
def addr_final():
    e(f"s_and_b32 s{sT}, s2, 1"); e(f"s_lshr_b32 s{sT+1}, s2, 2"); e(f"s_bfe_u32 s{sT+4}, s2, {(1 << 16) | 1}")
    e(f"s_lshl_b32 s{sT+2}, s{sT+1}, 15"); e(f"s_lshl_b32 s{sT+3}, s{sT}, 6"); e(f"s_add_u32 s{sT+2}, s{sT+2}, s{sT+3}")
    e(f"s_lshl_b32 s{sT+3}, s{sT+4}, 5"); e(f"s_add_u32 s{sT+2}, s{sT+2}, s{sT+3}"); e(f"s_add_u32 s{sT+2}, s{sT+2}, {WS_F}")
    e(f"v_lshrrev_b32 v{aFG}, 1, v0"); e(f"v_lshlrev_b32 v{aFG}, 8, v{aFG}")
    e(f"v_and_b32 v{g0+9}, 1, v0"); e(f"v_lshl_add_u32 v{aFG}, v{g0+9}, 4, v{aFG}")
for idx in range(11, 19):
    T = idx - 11; ab = (T & 1) * 32
    if idx == 18 and CFG["HO"]:
        addr_gather(); addr_f(); addr_merge1(); addr_merge2()
    wait_tile(idx)
    read_wfrags(idx, ab, agpr=True)
    e("s_waitcnt lgkmcnt(0)")
    if idx == 18 and CFG["LATE"] == 4: LIM[0] = 19
    top_up(idx, CFG["VA"] or None)
    for db in range(8):
        d = vr(vACC + 4*db, 4)
        e(f"v_mfma_f32_16x16x32_bf16 {d}, {ar(ab + 4*db, 4)}, {vr(vP + 4*T, 4)}, {'0' if T == 0 else d}")
    if T == CFG["H_AT"]: compute_h()
stamp()
if HS:
    for i in range(32): row_sum(vACC + i, (8,))
OSLOT = (18 % 4) * 8192
if not CFG["HO"]: addr_merge1()
e(f"s_mov_b64 s[{sEX}:{sEX+1}], exec")
e("s_mov_b32 exec_lo, 0x00ff00ff"); e("s_mov_b32 exec_hi, 0x00ff00ff")
for db in range(8):
    e(f"ds_write_b128 v{g0}, {vr(vACC+4*db,4)} offset:{OSLOT + db*64}")
e("s_mov_b32 exec_lo, 0x000000ff"); e("s_mov_b32 exec_hi, 0")
e(f"ds_write_b64 v{g0+1}, {vr(vM,2)}")
e(f"s_mov_b64 exec, s[{sEX}:{sEX+1}]")
if not CFG["HO"]: addr_merge2()
e("s_waitcnt lgkmcnt(0)")
if CFG["FINE2"]: stamp()
e("s_barrier")
if CFG["FINE2"]: stamp()
MO = vS
for w in range(4):
    e(f"ds_read_b64 {vr(MO+16+2*w,2)}, v{g0+4} offset:{w*64}")
for w, a in enumerate((g0+3, g0+7, g0+8, g0+9)):
    e(f"ds_read_b128 {vr(MO+4*w,4)}, v{a} offset:{OSLOT}")
e("s_waitcnt lgkmcnt(4)")
mm = MO + 24
e(f"v_max3_f32 v{mm}, v{MO+16}, v{MO+18}, v{MO+20}"); e(f"v_max_f32 v{mm}, v{mm}, v{MO+22}")
for w in range(4):
    e(f"v_sub_f32 v{MO+16+2*w}, v{MO+16+2*w}, v{mm}")
for w in range(4):
    e(f"v_exp_f32 v{MO+16+2*w}, v{MO+16+2*w}")
e(f"v_mul_f32 v{mm+2}, v{MO+16}, v{MO+17}")
for w in range(1, 4):
    e(f"v_fma_f32 v{mm+2}, v{MO+16+2*w}, v{MO+17+2*w}, v{mm+2}")
e(f"v_mov_b32 v{mm+1}, v{vTAG}"); e(f"v_mov_b32 v{mm+3}, v{vTAG}")
e("s_waitcnt lgkmcnt(0)")
og = MO + 28
for k in range(4):
    e(f"v_mul_f32 v{og+k}, v{MO+16}, v{MO+k}")
for w in range(1, 4):
    for k in range(4):
        e(f"v_fma_f32 v{og+k}, v{MO+16+2*w}, v{MO+4*w+k}, v{og+k}")
embed(og, og)
e.vmem(f"buffer_store_dwordx4 {vr(og,4)}, v{g0+5}, {srd('ws')}, s{sOP} offen{ST}", "st")
e.vmem(f"buffer_store_dwordx4 {vr(mm,4)}, v{g0+6}, {srd('ws')}, s{sMLP} offen{ST}", "st")
if CFG["LATE"] in (1, 2, 4):
    LIM[0] = 20; top_up(18)
stamp()
if not CFG["HO"]: addr_gather()
OG = vS + 40
o_loads = [f"buffer_load_dwordx4 {vr(OG+4*u,4)}, v{aOG}, {srd('ws')}, s{sOC} offen offset:{64*u}{LD}".replace(" offset:0", "") for u in range(2)]
o_loads += [f"buffer_load_dwordx4 {vr(OG+16,4)}, v{aML1}, {srd('ws')}, s{sT+5} offen{LD}",
            f"buffer_load_dwordx4 {vr(OG+20,4)}, v{aML2}, {srd('ws')}, s{sT+6} offen{LD}"]
if CFG["ACK"] & 2: e.wait_vm("st")
gather(o_loads, "og", 2)
if CFG["LATE"] == 3:
    LIM[0] = 20; top_up(18)
FA, FB = vFR + 8, vFR + 12
def select_F(F, vACC=vACC):
    e(f"s_mov_b64 s[{sEX}:{sEX+1}], exec")
    e("s_mov_b32 exec_lo, 0x00030003"); e("s_mov_b32 exec_hi, 0x00030003")
    for db in range(8):
        for r in range(4):
            e(f"v_mov_b32 v{F + r}, v{vACC + 4*db + r}")
        if db < 7: e("s_lshl_b64 exec, exec, 2")
    e(f"s_mov_b64 exec, s[{sEX}:{sEX+1}]")
    embed(F, F)
if not CFG["HO"]: addr_f()
if not CFG["ORD"]:
    wait_tile(19)
    read_wfrags(19, 64, agpr=True)
    e("s_waitcnt lgkmcnt(0)")
    for db in range(8):
        e(f"v_mfma_f32_16x16x32_bf16 {vr(vACC+4*db,4)}, {ar(64+4*db,4)}, {vr(vH,4)}, 0")
    select_F(FB)
    wait_tile(20)
    read_wfrags(20, 96, agpr=True)
stamp()
e.wait_vm("og")
if CFG["FINE2"]: stamp()
check_tags([OG+16+k for k in (1, 3, 5, 7)], o_loads, g0, g0+1, emb=(OG, OG+4), tmp=g0+2)
if CFG["FINE2"]: stamp()
gm = g0
e(f"v_mov_b32 v{gm}, v{OG+16}")
row_sum(gm, (2, 4, 8), "max_f32")
swap_red(gm, g0+1, 16, "max_f32"); swap_red(gm, g0+1, 32, "max_f32")
e(f"v_sub_f32 v{g0+2}, v{OG+16}, v{gm}"); e(f"v_sub_f32 v{g0+3}, v{OG+20}, v{gm}")
e(f"v_exp_f32 v{g0+2}, v{g0+2}"); e(f"v_exp_f32 v{g0+3}, v{g0+3}")
for i in range(8): e(f"v_and_b32 v{OG+i}, s{sM24}, v{OG+i}")
e(f"v_mul_f32 v{g0+2}, v{g0+2}, v{OG+18}")
OV = vS
for i in range(8):
    e(f"v_mul_f32 v{OV + i}, v{g0+3}, v{OG + i}")
for r in (2, 4, 8):
    for i in range(8):
        row_sum(OV + i, (r,))
    row_sum(g0+2, (r,))
e(f"s_lshl_b32 s{sT}, s{sW}, 8"); e(f"s_add_u32 s{sT}, s{sT}, {L_O2}")
e(f"v_lshlrev_b32 v{g0+5}, 7, v{B_}"); e(f"v_lshl_add_u32 v{g0+5}, v{G_}, 5, v{g0+5}")
e(f"v_add_u32 v{g0+6}, s{sT}, v{g0+5}"); e(f"v_add_u32 v{g0+5}, {L_O2}, v{g0+5}")
e(f"s_mov_b64 s[{sEX}:{sEX+1}], exec")
e("s_mov_b32 exec_lo, 0x00030003"); e("s_mov_b32 exec_hi, 0x00030003")
e(f"ds_write_b128 v{g0+6}, {vr(OV,4)}"); e(f"ds_write_b128 v{g0+6}, {vr(OV+4,4)} offset:16")
e(f"s_mov_b64 exec, s[{sEX}:{sEX+1}]")
swap_red(g0+2, g0+1, 16); swap_red(g0+2, g0+1, 32)
e(f"v_rcp_f32 v{g0+4}, v{g0+2}")
e(f"v_fma_f32 v{g0+7}, -v{g0+2}, v{g0+4}, 1.0"); e(f"v_fma_f32 v{g0+4}, v{g0+7}, v{g0+4}, v{g0+4}")
e("s_waitcnt lgkmcnt(0)")
if CFG["FINE2"]: stamp()
e("s_barrier")
if CFG["FINE2"]: stamp()
for w in range(4):
    for u in range(2):
        e(f"ds_read_b128 {vr(OV + 8 + 8*w + 4*u, 4)}, v{g0+5} offset:{w*256 + u*16}")
e("s_waitcnt lgkmcnt(0)")
for i in range(0, 8, 2):
    a = OV + 8 + i
    e(f"v_pk_add_f32 {vr(a,2)}, {vr(a,2)}, {vr(a+8,2)}"); e(f"v_pk_add_f32 {vr(a+16,2)}, {vr(a+16,2)}, {vr(a+24,2)}")
    e(f"v_pk_add_f32 {vr(a,2)}, {vr(a,2)}, {vr(a+16,2)}")
for i in range(8):
    e(f"v_mul_f32 v{OV+8+i}, v{OV+8+i}, v{g0+4}")
for i in range(4):
    bf16_round_pair(vO + i, OV + 8 + 2*i, OV + 9 + 2*i)
if CFG["ORD"]:
    wait_tile(19)
    read_wfrags(19, 64, agpr=True)
    wait_tile(20)
    read_wfrags(20, 96, agpr=True)
    e("s_waitcnt lgkmcnt(0)")
    for db in range(8):
        e(f"v_mfma_f32_16x16x32_bf16 {vr(vP+4*db,4)}, {ar(64+4*db,4)}, {vr(vH,4)}, 0")
for db in range(8):
    e(f"v_mfma_f32_16x16x32_bf16 {vr(vACC+4*db,4)}, {ar(96+4*db,4)}, {vr(vO,4)}, 0")
if CFG["HO"]: addr_final()
if CFG["ORD"]: select_F(FB, vP)
select_F(FA)
e.vmem(f"buffer_store_dwordx4 {vr(FA,4)}, v{aF}, {srd('ws')}, s{sFP} offen{ST}", "st")
e.vmem(f"buffer_store_dwordx4 {vr(FB,4)}, v{aF}, {srd('ws')}, s{sFP} offen offset:128{ST}", "st")
stamp()
if CFG["ACK"] & 1:
    e.wait_all(); stamp()
if not CFG["HO"]: addr_final()
FG = vS
f_loads = [f"buffer_load_dwordx4 {vr(FG,4)}, v{aFG}, {srd('ws')}, s{sT+2} offen{LD}",
           f"buffer_load_dwordx4 {vr(FG+4,4)}, v{aFG}, {srd('ws')}, s{sT+2} offen offset:128{LD}"]
gather(f_loads, "fg", 1)
e(f"s_lshl_b32 s{sT}, s{sT}, 11"); e(f"s_lshl_b32 s{sT+1}, s{sT+1}, 5"); e(f"s_add_u32 s{sT}, s{sT}, s{sT+1}")
e(f"s_lshl_b32 s{sT+4}, s{sT+4}, 4"); e(f"s_add_u32 s{sT}, s{sT}, s{sT+4}")
e(f"v_and_b32 v{g0+8}, 7, v{vLANE}"); e(f"v_bfrev_b32 v{g0+8}, v{g0+8}"); e(f"v_lshrrev_b32 v{g0+8}, 28, v{g0+8}")
e.vmem(f"buffer_load_ushort v{g0+9}, v{g0+8}, {srd('x')}, s{sT} offen", "xr")
e(f"s_lshl_b32 s{sT+1}, s{sW}, 6"); e(f"s_add_u32 s{sT+1}, s{sT+1}, {L_FR}")
e(f"v_and_b32 v{g0+11}, 1, v{vLANE}"); e(f"v_lshl_add_u32 v{g0+11}, v{G_}, 1, v{g0+11}")
e(f"v_lshlrev_b32 v{g0+11}, 3, v{g0+11}"); e(f"v_add_u32 v{g0+11}, s{sT+1}, v{g0+11}")
e(f"v_and_b32 v{g0+12}, 7, v{vLANE}"); e(f"v_lshlrev_b32 v{g0+12}, 3, v{g0+12}"); e(f"v_add_u32 v{g0+12}, {L_FR}, v{g0+12}")
e.wait_vm("fg", "xr")
if CFG["FINE2"]: stamp()
check_tags([], f_loads, g0, g0+1, emb=(FG, FG+4), tmp=g0+2)
if CFG["FINE2"]: stamp()
for i in range(8): e(f"v_and_b32 v{FG+i}, s{sM24}, v{FG+i}")
for i in range(0, 8, 2): e(f"v_permlane32_swap_b32 v{FG+i}, v{FG+i+1}")
for i in range(0, 8, 2): e(f"v_add_f32 v{FG+i}, v{FG+i}, v{FG+i+1}")
for i in (0, 4): e(f"v_permlane16_swap_b32 v{FG+i}, v{FG+i+2}")
e(f"v_add_f32 v{FG}, v{FG}, v{FG+2}"); e(f"v_add_f32 v{FG+1}, v{FG+4}, v{FG+6}")
for r in (2, 4, 8):
    row_sum(FG, (r,)); row_sum(FG+1, (r,))
e("s_mov_b32 exec_lo, 0x00030003"); e("s_mov_b32 exec_hi, 0x00030003")
e(f"ds_write_b64 v{g0+11}, {vr(FG,2)}")
e("s_waitcnt lgkmcnt(0)")
e("s_barrier")
e(f"s_cmp_lg_u32 s{sW}, 0")
e("s_cbranch_scc1 FIN")
e("s_mov_b32 exec_lo, 0xff"); e("s_mov_b32 exec_hi, 0")
for w in range(4):
    e(f"ds_read_b64 {vr(FG+2+2*w,2)}, v{g0+12} offset:{w*64}")
e(f"v_lshlrev_b32 v{g0+4}, 16, v{g0+9}")
e("s_waitcnt lgkmcnt(0)")
a = FG + 2
e(f"v_pk_add_f32 {vr(a,2)}, {vr(a,2)}, {vr(a+2,2)}"); e(f"v_pk_add_f32 {vr(a+4,2)}, {vr(a+4,2)}, {vr(a+6,2)}")
e(f"v_pk_add_f32 {vr(a,2)}, {vr(a,2)}, {vr(a+4,2)}")
bf16_round_pair(g0+2, a, a+1); unpack(g0+2, a, a+1)
e(f"v_add_f32 v{a}, v{a}, v{g0+4}")
bf16_round_pair(g0+2, a, a); e(f"v_lshlrev_b32 v{a}, 16, v{g0+2}")
e(f"v_add_f32 v{a}, v{a}, v{a+1}")
bf16_round_pair(g0+2, a, a)
e(f"buffer_store_short v{g0+2}, v{g0+8}, {srd('out')}, s{sT} offen")
e("s_cmp_lg_u32 s2, 0")
e("s_cbranch_scc1 FIN")
e("s_mov_b32 exec_lo, 1")
e(f"v_mov_b32 v{g0+3}, 0")
e(f"buffer_store_dword v{vTAG}, v{g0+3}, {srd('ws')}, 0 offen{ST}")
e("FIN:")
if DBG:
    stamp()
    e("s_mov_b32 exec_lo, -1"); e("s_mov_b32 exec_hi, 0")
    e(f"s_lshl_b32 s{sT}, s2, 2"); e(f"s_add_u32 s{sT}, s{sT}, s{sW}"); e(f"s_lshl_b32 s{sT}, s{sT}, 7"); e(f"s_add_u32 s{sT}, s{sT}, {WS_DBG}")
    e(f"v_lshlrev_b32 v{g0+3}, 2, v{vLANE}")
    e(f"buffer_store_dword v255, v{g0+3}, {srd('ws')}, s{sT} offen")
e("s_endpgm")
body = list(e.lines)
for s in slow: body += s
body += ["DONE:", "s_endpgm", "CODE_END:"]
body, nn = fix_hazards(body)

hdr = open(os.path.join(os.path.dirname(os.path.abspath(__file__)), "..", "cdna_kernels", NAME + ".s.ref")).read().split("\n")
hdr = [l for l in hdr if l.startswith(";") and "@launch" not in l and "Override" not in l and "grid=ceil" not in l]
out = hdr + [f"; @launch grid=(256,1,1) block=(256,1,1) lds={LDS_BYTES}",
             '.amdgcn_target "amdgcn-amd-amdhsa--gfx950"', ".text", f".globl {NAME}_kernel", ".p2align 8",
             f".type {NAME}_kernel,@function", f"{NAME}_kernel:"]
out += [("" if l.endswith(":") else "    ") + l for l in body]
out += ['.section .rodata,"a"', ".p2align 6", f".amdhsa_kernel {NAME}_kernel",
        "  .amdhsa_next_free_vgpr 512", "  .amdhsa_next_free_sgpr 102", "  .amdhsa_accum_offset 256",
        "  .amdhsa_float_denorm_mode_32 3",
        "  .amdhsa_group_segment_fixed_size 0", "  .amdhsa_kernarg_size 96", "  .amdhsa_user_sgpr_count 2",
        "  .amdhsa_user_sgpr_kernarg_segment_ptr 1", "  .amdhsa_system_sgpr_workgroup_id_x 1", ".end_amdhsa_kernel", ""]
open(sys.argv[1], "w").write("\n".join(out))
print("lines", len(body), "nops inserted", nn, "lds", LDS_BYTES, "stamps", nstamp[0], file=sys.stderr)
```

```python
import sys, os
sys.path.insert(0, os.path.dirname(os.path.abspath(__file__)))
from asmlib import Emit, fix_hazards

NAME = "parallel_sum__gqa_block_cached__swiglu_ffn__decode"
CFG = dict(AHEAD=3, PRE=2, DBG=0, SPIN=30000, QR_AT=2, QR_CHK=5, H3_AT=4, QG_AT=7, FINE=0, PF=0, SPR=1, H_AT=2, FINE2=0, STM=1, ACK=0, TLB=0, ROT=0, LDM=0, QFLIP=0, FS=0, FT=0, JROT=0, LATE=0, VA=0, ORD=0, JG=0, JU=0, GX=0, GS=0, HO=0, HS=0, E0=0, AH2=0, AH4=0, AHV=0, AHW=0, SP3=12, SP4=16, PQ=4)
for a in sys.argv[2:]:
    k, v = a.split("="); CFG[k] = int(v, 0)
AHEAD = CFG["AHEAD"]; DBG = CFG["DBG"]
ST = {0: " sc0 sc1", 1: " sc1", 2: " sc1 nt", 3: " sc0 sc1 nt"}[CFG["STM"]]

LD = {0: " sc1", 1: " sc0 sc1", 2: " sc1 nt", 3: " sc0 sc1 nt"}[CFG["LDM"]]
WS_QP, WS_QF, WS_GU, WS_O, WS_ML, WS_F = 0x10000, 0x90000, 0x100000, 0x200000, 0x400000, 0x480000
WS_DBG = 0x1000000
WS_NUM = 0x2000000 if DBG else 0x1000000
OOB = 0x7ff00000
MISC = 131072
L_R = MISC
L_Q = MISC + 12288
L_H = L_Q + 2176 + 128
L_ML = L_H + 4352
L_O2 = L_ML + 256
L_FR = L_O2 + 1024
LDS_BYTES = L_FR + 256
LDS_BYTES = (LDS_BYTES + 1023) // 1024 * 1024
sW, sGRP, sHI, sR5, sHALF = 3, 4, 5, 6, 7
SRD = dict(K=8, V=12, wq=16, wg=20, wu=24, wo=28, wd=32, ws=36, x=40, out=44)
sTAG, sRING, sKV, sSO = 48, 49, 50, 51
sWQ, sWG, sWO = 86, 87, 88
sGG = 100
sWU, sJG, sJU = 62, 63, 99
sT = 90
sSCALE = 64
sL2E = 66
sMASK = 68
sCNT = 69
sEX = 70
sQP, sQPR, sQF, sQFR, sGUP, sGUC, sOP, sMLP, sOC, sFP, sFC = 72, 73, 74, 75, 76, 77, 78, 79, 80, 81, 82
sSEL, sCK, sM24 = 52, 56, 58
sSTAMP = 84
vTID, vLANE = 0, 1
vKD, vVD, vKR, vTR = 2, 6, 8, 12
vWQD, vWGD, vWOD = 20, 22, 24
vXN, vH, vO = 26, 30, 34
vTAG = 38
vQ = 40
vA = 56
vS, vP, vACC, vFR, vT = 64, 128, 160, 192, 224

e = Emit()
slow = []
nstamp = [0]
def stamp():
    if DBG:
        e(f"s_memrealtime s[{sSTAMP}:{sSTAMP+1}]")
        e("s_waitcnt lgkmcnt(0)")
        e(f"v_writelane_b32 v255, s{sSTAMP}, {nstamp[0]}")
        nstamp[0] += 1
def srd(n): return f"s[{SRD[n]}:{SRD[n]+3}]"
def vr(a, n=1): return f"v{a}" if n == 1 else f"v[{a}:{a+n-1}]"
def ar(a, n=1): return f"a{a}" if n == 1 else f"a[{a}:{a+n-1}]"

TILES = ["wq", "wg", "wu"] + [f"K{i}" for i in range(8)] + [f"V{i}" for i in range(8)] + ["wd", "wo"]
issued = [0]
LIM = [{0: 20, 1: 19, 2: 18, 3: 18, 4: 18}[CFG["LATE"]]]
def issue_unit(un, cont=False):
    idx = un >> 2; q = un & 3
    t = TILES[idx]; slot = idx % 4; tag = ("tile", idx)
    if t[0] in "KV":
        n = int(t[1]); rs = srd(t[0]); h = q >> 1
        if not (cont and (q & 1)):
            e(f"s_add_u32 m0, s{sRING}, {slot*8192 + h*4096}")
            e(f"s_add_u32 s{sSO}, s{sKV}, {n*32768 + h*4096}")
        for jj in (2*(q & 1), 2*(q & 1) + 1):
            v = vKD + jj if t[0] == "K" else vVD + (jj & 1)
            off = f" offset:{jj*1024}" if jj else ""
            e.vmem(f"buffer_load_dwordx4 v{v}, {rs}, s{sSO} offen{off} nt lds", tag)
    else:
        pitch, vb, sb = {"wq": (8192, vWQD, sWQ), "wg": (7168, vWGD, sWG), "wu": (7168, vWGD, sWU),
                         "wo": (2048, vWOD, sWO), "wd": (2048, vWOD, sWO)}[t]
        p = q
        e(f"s_add_u32 m0, s{sRING}, {slot*8192 + p*2048}")
        e(f"s_add_u32 s{sSO}, s{sb}, {8*p*pitch}")
        e.vmem(f"buffer_load_dwordx4 v{vb}, {srd(t)}, s{sSO} offen nt lds", tag)
        e.vmem(f"buffer_load_dwordx4 v{vb+1}, {srd(t)}, s{sSO} offen offset:1024 nt lds", tag)
def issue_next():
    cont = False
    while issued[0] < 4*len(TILES):
        issue_unit(issued[0], cont); issued[0] += 1; cont = True
        if issued[0] % 4 == 0: break
def top_up(idx, ahead=None, q4=None):
    base = CFG["AH4"] or 2*CFG["AH2"] or 4*AHEAD
    if idx >= 11 and CFG["AHV"]: base = CFG["AHV"]
    if idx < 3 and CFG["AHW"]: base = CFG["AHW"]
    ah4 = q4 if q4 else (4*ahead if ahead else base)
    cont = False
    while issued[0] <= 4*LIM[0] + 3 and issued[0] <= 4*idx + 3 + ah4:
        issue_unit(issued[0], cont); issued[0] += 1; cont = True
def wait_tile(idx):
    e.wait_vm(("tile", idx))

def read_wfrags(idx, dst, agpr=False):
    slot = idx % 4
    for db in range(8):
        for u in range(2):
            r = dst + db*4 + u*2
            d = ar(r, 2) if agpr else vr(r, 2)
            e(f"ds_read_b64_tr_b16 {d}, v{vTR+db} offset:{slot*8192 + u*4096}")

gid = [0]
def embed(dst, src):
    for i in range(4): e(f"v_perm_b32 v{dst+i}, v{src+i}, v{vTAG}, s{sSEL+i}")
def check_tags(tagregs, reissue, t0, t1, emb=(), tmp=None):
    def chk(out):
        rs = list(tagregs)
        for j, gr in enumerate(emb):
            out(f"v_perm_b32 v{tmp+j}, v{gr+1}, v{gr}, s{sCK}")
            out(f"v_perm_b32 v{t0}, v{gr+3}, v{gr+2}, s{sCK+1}")
            out(f"v_or_b32 v{tmp+j}, v{tmp+j}, v{t0}")
            rs.append(tmp + j)
        if len(rs) == 1:
            out(f"v_cmp_ne_u32 vcc, s{sTAG}, v{rs[0]}")
            return
        for op, t in (("min", t0), ("max", t1)):
            r = list(rs)
            cur = None
            while r:
                if cur is None:
                    if len(r) >= 3:
                        out(f"v_{op}3_u32 v{t}, v{r[0]}, v{r[1]}, v{r[2]}"); r = r[3:]
                    else:
                        out(f"v_{op}_u32 v{t}, v{r[0]}, v{r[1]}"); r = r[2:]
                    cur = t
                elif len(r) >= 2:
                    out(f"v_{op}3_u32 v{t}, v{t}, v{r[0]}, v{r[1]}"); r = r[2:]
                else:
                    out(f"v_{op}_u32 v{t}, v{t}, v{r[0]}"); r = r[1:]
        out(f"v_xor_b32 v{t0}, s{sTAG}, v{t0}")
        out(f"v_xor_b32 v{t1}, s{sTAG}, v{t1}")
        out(f"v_or_b32 v{t0}, v{t0}, v{t1}")
        out(f"v_cmp_ne_u32 vcc, 0, v{t0}")
    g = gid[0]; gid[0] += 1
    chk(e)
    e(f"s_cbranch_vccnz SLOW{g}")
    e(f"BACK{g}:")
    s = []
    s.append(f"SLOW{g}:")
    s.append(f"s_mov_b32 s{sCNT}, {CFG['SPIN']}")
    s.append(f"LOOP{g}:")
    s.append("s_mov_b64 exec, vcc")
    s += reissue
    s.append("s_waitcnt vmcnt(0)")
    chk(s.append)
    s.append(f"s_cbranch_vccz OUT{g}")
    s.append(f"s_sub_u32 s{sCNT}, s{sCNT}, 1")
    s.append(f"s_cmp_lg_u32 s{sCNT}, 0")
    s.append(f"s_cbranch_scc1 LOOP{g}")
    s.append(f"OUT{g}:")
    s.append("s_mov_b64 exec, -1")
    if DBG:
        s.append(f"s_sub_u32 s{sCNT}, {CFG['SPIN'] + 1}, s{sCNT}")
        s.append(f"v_writelane_b32 v255, s{sCNT}, {27 + g}")
    s.append(f"s_branch BACK{g}")
    slow.append(s)

def gather(loads, tag, ft=0):
    for l in loads:
        if CFG["FT"] & ft: l = l.replace(LD, "")
        e.vmem(l, tag)

def bf16_round_pair(dst_pk, a, b):
    e(f"v_cvt_pk_bf16_f32 v{dst_pk}, v{a}, v{b}")
def unpack(pk, lo, hi):
    e(f"v_and_b32 v{hi}, s{sMASK}, v{pk}")
    e(f"v_lshlrev_b32 v{lo}, 16, v{pk}")
def row_sum(reg, rors, op="add_f32"):
    for r in rors:
        e(f"v_{op}_dpp v{reg}, v{reg}, v{reg} row_ror:{r} row_mask:0xf bank_mask:0xf")
def swap_red(reg, tmp, which, op="add_f32"):
    e(f"v_mov_b32 v{tmp}, v{reg}")
    e(f"v_permlane{which}_swap_b32 v{reg}, v{tmp}")
    e(f"v_{op} v{reg}, v{reg}, v{tmp}")

e(f"s_cmp_ge_u32 s2, 256")
e(f"s_cbranch_scc1 DONE")
e("s_load_dwordx16 s[52:67], s[0:1], 0")
e("s_load_dwordx8 s[68:75], s[0:1], 64")
if DBG: e("v_mov_b32 v255, 0")
stamp()
e(f"v_and_b32 v{vLANE}, 63, v0")
e(f"v_lshrrev_b32 v{vT}, 6, v0")
e(f"v_readfirstlane_b32 s{sW}, v{vT}")
e(f"s_and_b32 s{sGRP}, s2, 7")
if CFG["GX"]: e(f"s_xor_b32 s{sGRP}, s{sGRP}, {CFG['GX']}")
e(f"s_lshr_b32 s{sHI}, s2, 3")
e(f"s_and_b32 s{sHALF}, s{sHI}, 1")
e(f"s_lshr_b32 s{sR5}, s{sHI}, 1")
if CFG["ROT"] == 9:
    e(f"s_add_u32 s{sSO}, s{sGRP}, 1"); e(f"s_and_b32 s{sSO}, s{sSO}, 3"); e(f"s_lshl_b32 s{sSO}, s{sSO}, 1")
    e(f"s_lshr_b32 s{sR5+2}, s{sGRP}, 2"); e(f"s_add_u32 s{sSO}, s{sSO}, s{sR5+2}"); e(f"s_lshl_b32 s{sSO}, s{sSO}, 4")
elif CFG["ROT"]:
    e(f"s_add_u32 s{sSO}, s{sGRP}, {CFG['ROT']}"); e(f"s_and_b32 s{sSO}, s{sSO}, 7"); e(f"s_lshl_b32 s{sSO}, s{sSO}, 4")
else:
    e(f"s_lshl_b32 s{sSO}, s{sGRP}, 4")
e(f"s_add_u32 s{sR5}, s{sR5}, s{sSO}")
sJ = 89
e(f"s_add_u32 s{sJ}, s{sHI}, {CFG['JROT']}"); e(f"s_and_b32 s{sJ}, s{sJ}, 31")
if CFG["GS"]:
    e(f"s_lshr_b32 s{sT}, s{sHI}, 2"); e(f"s_xor_b32 s{sT}, s{sT}, s{sGRP}")
    if CFG["GS"] == 2: e(f"s_xor_b32 s{sT}, s{sT}, 1")
    e(f"s_and_b32 s{sT}, s{sT}, 1")
    e(f"s_cmp_ge_u32 s{sHI}, 24"); e(f"s_cselect_b32 s{sT}, s{sT}, 0")
    e(f"s_xor_b32 s{sGG}, s{sGRP}, s{sT}")
    e(f"s_lshl_b32 s{sT}, s{sT}, 2"); e(f"s_xor_b32 s{sJU}, s{sHI}, s{sT}")
N_, G_, B_ = vT, vT+1, vT+2
e(f"v_and_b32 v{N_}, 15, v{vLANE}")
e(f"v_lshrrev_b32 v{G_}, 4, v{vLANE}")
e(f"v_and_b32 v{B_}, 1, v{vLANE}")
e("s_waitcnt lgkmcnt(0)")
stamp()
ptr = dict(x=52, K=54, V=56, wq=58, wo=60, wg=64, wu=66, wd=68, out=70, ws=74)
size = dict(x=4096, K=64 << 20, V=64 << 20, wq=8 << 20, wo=8 << 20, wg=7 << 20, wu=7 << 20, wd=7 << 20, out=4096, ws=WS_NUM)
def mk_srd(*names):
    for n in names:
        b = SRD[n]
        e(f"s_mov_b64 s[{b}:{b+1}], s[{ptr[n]}:{ptr[n]+1}]")
        e(f"s_mov_b32 s{b+2}, {size[n]}")
        e(f"s_mov_b32 s{b+3}, 0x20000")
t = vT + 5
def wvoff(dst, pitch):
    for par in range(2):
        e(f"v_add_u32 v{t}, {4*par}, v{G_}")
        e(f"v_lshlrev_b32 v{t+1}, 1, v{t}")
        e(f"v_xor_b32 v{t+1}, v{t+1}, v{N_}")
        e(f"v_lshlrev_b32 v{t+1}, 4, v{t+1}")
        e(f"v_mul_u32_u24 v{t}, {pitch}, v{t}")
        e(f"v_add_u32 v{dst+par}, v{t}, v{t+1}")
        if par: e(f"v_subrev_u32 v{dst+par}, 1024, v{dst+par}")
mk_srd("x", "wq")
e(f"s_load_dword s{sTAG}, s[74:75], 0")
if CFG["TLB"] & 8:
    e(f"s_mul_i32 s98, s{sGRP}, {128*7168}")
    e(f"s_lshl_b32 s99, s{sGRP}, 23"); e(f"s_lshl_b32 s100, s{sHI}, 18"); e(f"s_add_u32 s99, s99, s100")
    e(f"s_load_dword s100, s[{ptr['wg']}:{ptr['wg']+1}], s98")
    e(f"s_load_dword s101, s[{ptr['K']}:{ptr['K']+1}], s99")
    e(f"s_load_dword s98, s[{ptr['wu']}:{ptr['wu']+1}], s98")
    if CFG["TLB"] & 16:
        e(f"s_load_dword s99, s[{ptr['V']}:{ptr['V']+1}], s99")
XS = vS
e(f"v_lshlrev_b32 v{vT+3}, 6, v{vLANE}")
for i in range(4):
    e.vmem(f"buffer_load_dwordx4 {vr(XS+4*i,4)}, v{vT+3}, {srd('x')}, 0 offen offset:{16*i}", "xs")
XF = vS + 16
e(f"s_lshl_b32 s{sT}, s{sGRP}, 7")
e(f"s_lshl_b32 s{sT+1}, s{sW}, 5")
e(f"s_add_u32 s{sT}, s{sT}, s{sT+1}")
e(f"s_lshl_b32 s{sT+2}, s{sT}, 1")
e(f"v_lshlrev_b32 v{vT+4}, 11, v{B_}")
e(f"v_lshl_add_u32 v{vT+4}, v{G_}, 3, v{vT+4}")
e.vmem(f"buffer_load_dwordx2 {vr(XF,2)}, v{vT+4}, {srd('x')}, s{sT+2} offen", "xf")
e.vmem(f"buffer_load_dwordx2 {vr(XF+2,2)}, v{vT+4}, {srd('x')}, s{sT+2} offen offset:32", "xf")
XF2 = vS + 20
if CFG["GS"]:
    e(f"s_lshl_b32 s{sT+3}, s{sGG}, 7"); e(f"s_add_u32 s{sT+3}, s{sT+3}, s{sT+1}")
    e(f"s_lshl_b32 s{sT+4}, s{sT+3}, 1")
    e.vmem(f"buffer_load_dwordx2 {vr(XF2,2)}, v{vT+4}, {srd('x')}, s{sT+4} offen", "xf")
    e.vmem(f"buffer_load_dwordx2 {vr(XF2+2,2)}, v{vT+4}, {srd('x')}, s{sT+4} offen offset:32", "xf")
e(f"s_lshl_b32 s{sRING}, s{sW}, 15")
e(f"s_lshl_b32 s{sT+1}, s{sJ}, 8")
e(f"s_lshl_b32 s{sWQ}, s{sT}, 13")
e(f"s_add_u32 s{sWQ}, s{sWQ}, s{sT+1}")
wvoff(vWQD, 8192)
if CFG["FINE"]: stamp()
issue_next()
if CFG["FINE"]: stamp()
mk_srd("wg", "wu")
e(f"s_mul_i32 s{sWG}, s{sT+3 if CFG['GS'] else sT}, 7168")
if CFG["GS"]:
    e(f"s_mov_b32 s{sJG}, s{sJU}")
else:
    e(f"s_add_u32 s{sJG}, s{sJ}, {CFG['JG']}"); e(f"s_and_b32 s{sJG}, s{sJG}, 31")
    e(f"s_add_u32 s{sJU}, s{sJ}, {CFG['JU']}"); e(f"s_and_b32 s{sJU}, s{sJU}, 31")
e(f"s_lshl_b32 s{sT+1}, s{sJU}, 8"); e(f"s_add_u32 s{sWU}, s{sWG}, s{sT+1}")
e(f"s_lshl_b32 s{sT+1}, s{sJG}, 8"); e(f"s_add_u32 s{sWG}, s{sWG}, s{sT+1}")
e(f"s_cmp_ge_u32 s{sJG}, 28")
e(f"s_cselect_b32 s{sWG}, 0, s{sWG}")
e(f"s_cselect_b32 s{SRD['wg']+2}, 0, s{SRD['wg']+2}")
e(f"s_cmp_ge_u32 s{sJU}, 28")
e(f"s_cselect_b32 s{sWU}, 0, s{sWU}")
e(f"s_cselect_b32 s{SRD['wu']+2}, 0, s{SRD['wu']+2}")
wvoff(vWGD, 7168)
if CFG["PQ"] != 4:
    for i in range(CFG["PQ"]): issue_unit(issued[0], i > 0); issued[0] += 1
else:
    for i in range(min(CFG["PRE"], 3) - 1): issue_next()
if CFG["FINE"]: stamp()
if CFG["PF"]:
    e(f"s_getpc_b64 s[{sT+4}:{sT+5}]")
    e("PCREF:")
    e(f"v_lshlrev_b32 v{vT+6}, 7, v0")
    e(f"v_min_u32 v{vT+6}, CODE_END-PCREF-4, v{vT+6}")
    e(f"v_mov_b32 v{vT+7}, s{sT+5}")
    e(f"v_add_co_u32 v{vT+6}, vcc, s{sT+4}, v{vT+6}")
    e(f"v_addc_co_u32 v{vT+7}, vcc, 0, v{vT+7}, vcc")
    e.vmem(f"global_load_dword v254, v[{vT+6}:{vT+7}], off", "pf")
mk_srd("ws", "K", "V", "wo", "wd", "out")
e(f"s_lshl_b32 s{sKV}, s{sGRP}, 23")
e(f"s_lshl_b32 s{sT}, s{sHI}, 18")
e(f"s_add_u32 s{sKV}, s{sKV}, s{sT}")
e(f"s_lshl_b32 s{sT}, s{sW}, 13")
e(f"s_add_u32 s{sKV}, s{sKV}, s{sT}")
e(f"s_lshl_b32 s{sWO}, s{sR5}, 16")
e(f"s_lshl_b32 s{sT}, s{sHALF}, 10")
e(f"s_add_u32 s{sWO}, s{sWO}, s{sT}")
e(f"s_lshl_b32 s{sT}, s{sW}, 8")
e(f"s_add_u32 s{sWO}, s{sWO}, s{sT}")
e(f"s_cmp_ge_u32 s{sR5}, 112")
e(f"s_cselect_b32 s{SRD['wd']+2}, 0, s{SRD['wd']+2}")
if CFG["TLB"]:
    e(f"v_mov_b32 v{t}, 0")
    if CFG["TLB"] & 1:
        e.vmem(f"buffer_load_dword v254, v{t}, {srd('K')}, s{sKV} offen nt", "pf")
        e.vmem(f"buffer_load_dword v254, v{t}, {srd('V')}, s{sKV} offen nt", "pf")
    if CFG["TLB"] & 2:
        e.vmem(f"buffer_load_dword v254, v{t}, {srd('wo')}, s{sWO} offen nt", "pf")
        e.vmem(f"buffer_load_dword v254, v{t}, {srd('wd')}, s{sWO} offen nt", "pf")
    if CFG["TLB"] & 4:
        e(f"v_min_u32 v{t+1}, 4, v{vLANE}")
        e(f"v_lshlrev_b32 v{t+1}, 21, v{t+1}")
        e(f"s_lshl_b32 s{sT}, s2, 2"); e(f"s_add_u32 s{sT}, s{sT}, s{sW}"); e(f"s_lshl_b32 s{sT}, s{sT}, 8")
        e.vmem(f"buffer_load_dword v254, v{t+1}, {srd('ws')}, s{sT} offen sc1", "pf")
for j in range(4):
    e(f"v_add_u32 v{t}, {4*j}, v{G_}")
    e(f"v_xor_b32 v{t}, v{t}, v{N_}")
    e(f"v_lshlrev_b32 v{t}, 4, v{t}")
    e(f"v_lshl_add_u32 v{vKD+j}, v{G_}, 8, v{t}")
for par in range(2):
    e(f"v_add_u32 v{t}, {4*par}, v{G_}")
    e(f"v_lshlrev_b32 v{t}, 1, v{t}")
    e(f"v_xor_b32 v{t}, v{t}, v{N_}")
    e(f"v_lshlrev_b32 v{t}, 4, v{t}")
    e(f"v_lshl_add_u32 v{vVD+par}, v{G_}, 8, v{t}")
for i in range(CFG["PRE"] - 3): issue_next()
wvoff(vWOD, 2048)
e(f"v_lshlrev_b32 v{t+1}, 8, v{N_}")
e(f"v_add_u32 v{t+1}, s{sRING}, v{t+1}")
for s in range(4):
    e(f"v_add_u32 v{t}, {4*s}, v{G_}")
    e(f"v_xor_b32 v{t}, v{t}, v{N_}")
    e(f"v_lshl_add_u32 v{vKR+s}, v{t}, 4, v{t+1}")
e(f"v_lshrrev_b32 v{t}, 2, v{vLANE}")
e(f"v_and_b32 v{t+1}, 7, v{t}")
e(f"v_lshlrev_b32 v{t}, 8, v{t}")
e(f"v_add_u32 v{t}, s{sRING}, v{t}")
e(f"v_and_b32 v{t+2}, 3, v{vLANE}")
e(f"v_lshlrev_b32 v{t+2}, 3, v{t+2}")
e(f"v_add_u32 v{t}, v{t}, v{t+2}")
for db in range(8):
    e(f"v_xor_b32 v{t+2}, {db}, v{t+1}")
    e(f"v_lshl_add_u32 v{vTR+db}, v{t+2}, 5, v{t}")
stamp()
e("s_waitcnt lgkmcnt(0)")
e(f"s_lshl_b32 s{sT}, s{sJ}, 14"); e(f"s_lshl_b32 s{sT+1}, s{sGRP}, 10")
e(f"s_add_u32 s{sT}, s{sT}, s{sT+1}"); e(f"s_add_u32 s{sQP}, s{sT}, {WS_QP}")
e(f"s_lshr_b32 s{sT}, s{sGRP}, 2"); e(f"s_and_b32 s{sT+1}, s{sGRP}, 3")
if CFG["QFLIP"]: e(f"s_xor_b32 s{sT}, s{sT}, 1")
e(f"s_lshl_b32 s{sT+2}, s{sT+1}, 2"); e(f"s_add_u32 s{sT+2}, s{sT+2}, s{sW}")
e(f"s_lshl_b32 s{sT+3}, s{sHI}, 14"); e(f"s_lshl_b32 s{sT+4}, s{sT}, 13")
e(f"s_add_u32 s{sT+3}, s{sT+3}, s{sT+4}"); e(f"s_lshl_b32 s{sT+4}, s{sT+2}, 6")
e(f"s_add_u32 s{sT+3}, s{sT+3}, s{sT+4}"); e(f"s_add_u32 s{sQPR}, s{sT+3}, {WS_QP}")
e(f"s_lshl_b32 s{sT+3}, s{sT}, 14"); e(f"s_lshl_b32 s{sT+4}, s{sHI}, 9")
e(f"s_add_u32 s{sT+3}, s{sT+3}, s{sT+4}"); e(f"s_lshl_b32 s{sT+4}, s{sT+2}, 5")
e(f"s_add_u32 s{sT+3}, s{sT+3}, s{sT+4}"); e(f"s_add_u32 s{sQF}, s{sT+3}, {WS_QF}")
e(f"s_lshl_b32 s{sT+3}, s{sGRP}, 12"); e(f"s_add_u32 s{sQFR}, s{sT+3}, {WS_QF}")
e(f"s_cmp_ge_u32 s{sW}, 2"); e(f"s_cselect_b32 s{sT+3}, s{sJU}, s{sJG}")
e(f"s_lshl_b32 s{sT+3}, s{sT+3}, 15"); e(f"s_lshl_b32 s{sT+4}, s{sGG if CFG['GS'] else sGRP}, 9"); e(f"s_add_u32 s{sT+3}, s{sT+3}, s{sT+4}")
e(f"s_lshr_b32 s{sT+4}, s{sW}, 1"); e(f"s_lshl_b32 s{sT+4}, s{sT+4}, 12"); e(f"s_add_u32 s{sT+3}, s{sT+3}, s{sT+4}")
e(f"s_and_b32 s{sT+4}, s{sW}, 1"); e(f"s_lshl_b32 s{sT+4}, s{sT+4}, 8"); e(f"s_add_u32 s{sT+3}, s{sT+3}, s{sT+4}")
e(f"s_add_u32 s{sGUP}, s{sT+3}, {WS_GU}")
e(f"s_lshl_b32 s{sT+3}, s{sR5}, 13"); e(f"s_add_u32 s{sGUC}, s{sT+3}, {WS_GU}")
e(f"s_lshl_b32 s{sT+3}, s2, 0");
e(f"s_lshl_b32 s{sT+3}, s{sGRP}, 5"); e(f"s_add_u32 s{sT+3}, s{sT+3}, s{sHI}"); e(f"s_lshl_b32 s{sT+3}, s{sT+3}, 12")
e(f"s_add_u32 s{sOP}, s{sT+3}, {WS_O}")
e(f"s_lshl_b32 s{sT+3}, s{sGRP}, 12"); e(f"s_lshl_b32 s{sT+4}, s{sHI}, 4"); e(f"s_add_u32 s{sT+3}, s{sT+3}, s{sT+4}")
e(f"s_add_u32 s{sMLP}, s{sT+3}, {WS_ML}")
e(f"s_mov_b32 s{sSCALE}, 0x3db504f3"); e(f"s_mov_b32 s{sSCALE+1}, 0x3db504f3")
e(f"s_mov_b32 s{sL2E}, 0x3fb8aa3b"); e(f"s_mov_b32 s{sL2E+1}, 0x3fb8aa3b")
e(f"s_mov_b32 s{sMASK}, 0xffff0000")
for i in range(4): e(f"s_mov_b32 s{sSEL+i}, {hex(0x07060500 + i)}")
e(f"s_mov_b32 s{sCK}, 0x0c0c0400"); e(f"s_mov_b32 s{sCK+1}, 0x04000c0c"); e(f"s_mov_b32 s{sM24}, 0xffffff00")

e("s_waitcnt lgkmcnt(0)")
e(f"s_mul_i32 s{sTAG}, s{sTAG}, 1664525")
e(f"s_add_u32 s{sTAG}, s{sTAG}, 1013904223")
e(f"v_mov_b32 v{vTAG}, s{sTAG}")
stamp()
e.wait_vm("xs")
if CFG["E0"] == 2: top_up(0)
stamp()
X = vS + 24
for i in range(16):
    unpack(XS + i, X + 2*i, X + 2*i + 1)
acc = vT + 4
e(f"v_pk_add_f32 {vr(acc,2)}, {vr(X,2)}, {vr(X+2,2)}")
for i in range(2, 16):
    e(f"v_pk_add_f32 {vr(acc,2)}, {vr(acc,2)}, {vr(X+2*i,2)}")
e(f"v_add_f32 v{acc}, v{acc}, v{acc+1}")
row_sum(acc, (8, 4, 2, 1))
swap_red(acc, acc+1, 16)
e(f"v_mul_f32 v{acc}, 0x3a800000, v{acc}")
e(f"v_mov_b32 v{acc+1}, v{acc}")
va = acc + 2
for i in range(16):
    e(f"v_pk_add_f32 {vr(X+2*i,2)}, {vr(X+2*i,2)}, {vr(acc,2)} neg_lo:[0,1] neg_hi:[0,1]")
e(f"v_pk_mul_f32 {vr(va,2)}, {vr(X,2)}, {vr(X,2)}")
for i in range(1, 16):
    e(f"v_pk_fma_f32 {vr(va,2)}, {vr(X+2*i,2)}, {vr(X+2*i,2)}, {vr(va,2)}")
e(f"v_add_f32 v{va}, v{va}, v{va+1}")
row_sum(va, (8, 4, 2, 1))
swap_red(va, va+1, 16)
e(f"v_mul_f32 v{va}, 0x3a800000, v{va}")
bf16_round_pair(acc, acc, va)
unpack(acc, acc+1, va)
e(f"v_add_f32 v{va}, 0x3727c5ac, v{va}")
bf16_round_pair(va, va, va)
e(f"v_and_b32 v{va}, s{sMASK}, v{va}")
e(f"v_sqrt_f32 v{va}, v{va}")
bf16_round_pair(va, va, va)
e(f"v_and_b32 v{va}, s{sMASK}, v{va}")
e(f"v_readlane_b32 s{sT}, v{acc+1}, 0")
e(f"v_readlane_b32 s{sT+1}, v{acc+1}, 32")
e(f"v_readlane_b32 s{sT+2}, v{va}, 0")
e(f"v_readlane_b32 s{sT+3}, v{va}, 32")
e(f"v_cmp_eq_u32 vcc, 1, v{B_}")
e(f"v_mov_b32 v{acc}, s{sT}"); e(f"v_mov_b32 v{acc+1}, s{sT+1}")
e(f"v_cndmask_b32 v{acc}, v{acc}, v{acc+1}, vcc")
e(f"v_mov_b32 v{va}, s{sT+2}"); e(f"v_mov_b32 v{va+1}, s{sT+3}")
e(f"v_cndmask_b32 v{va}, v{va}, v{va+1}, vcc")
e(f"v_rcp_f32 v{va+1}, v{va}")
e.wait_vm("xf")
Y = X
def norm_frag(XF, dst):
    for i in range(4):
        unpack(XF + i, Y + 2*i, Y + 2*i + 1)
    for i in range(8):
        e(f"v_sub_f32 v{Y+i}, v{Y+i}, v{acc}")
    for i in range(4):
        bf16_round_pair(XF + i, Y + 2*i, Y + 2*i + 1)
        unpack(XF + i, Y + 2*i, Y + 2*i + 1)
    for i in range(8):
        e(f"v_mul_f32 v{Y+8+i}, v{Y+i}, v{va+1}")
        e(f"v_fma_f32 v{Y+i}, -v{Y+8+i}, v{va}, v{Y+i}")
        e(f"v_fma_f32 v{Y+i}, v{Y+i}, v{va+1}, v{Y+8+i}")
    for i in range(4):
        bf16_round_pair(dst + i, Y + 2*i, Y + 2*i + 1)
norm_frag(XF, vXN)
vXG = vXN
if CFG["GS"]:
    vXG = vH
    norm_frag(XF2, vXG)
aRW, aT8, aLN16, aT16, aN272 = vA, vA+1, vA+2, vA+3, vA+4
e(f"s_lshl_b32 s{sT}, s{sW}, 10"); e(f"s_add_u32 s{sT}, s{sT}, {L_R}")
e(f"v_lshlrev_b32 v{aRW}, 9, v{B_}"); e(f"v_lshl_add_u32 v{aRW}, v{G_}, 4, v{aRW}"); e(f"v_add_u32 v{aRW}, s{sT}, v{aRW}")
e(f"v_lshlrev_b32 v{aT16}, 4, v0")
e(f"v_mul_u32_u24 v{aN272}, 272, v{N_}"); e(f"v_lshl_add_u32 v{aN272}, v{G_}, 4, v{aN272}")
stamp()

def proj_tile(idx, mat):
    wait_tile(idx)
    if idx == 0 and CFG["E0"] == 1: top_up(0)
    if idx == 0: stamp()
    read_wfrags(idx, vFR)
    e("s_waitcnt lgkmcnt(0)")
    return
def proj_mfma(mat, bfrag):
    for db in range(8):
        e(f"v_mfma_f32_16x16x32_bf16 {vr(vACC+4*db,4)}, {vr(vFR+4*db,4)}, {vr(bfrag,4)}, 0")
def proj_write(mat):
    e(f"s_mov_b64 s[{sEX}:{sEX+1}], exec")
    e("s_mov_b32 exec_lo, 0x00030003"); e("s_mov_b32 exec_hi, 0x00030003")
    for db in range(8):
        e(f"ds_write_b128 v{aRW}, {vr(vACC+4*db,4)} offset:{mat*4096 + db*64}")
    e(f"s_mov_b64 exec, s[{sEX}:{sEX+1}]")

proj_tile(0, 0)
proj_mfma(0, vXN)
proj_write(0)
e("s_waitcnt lgkmcnt(0)")
e("s_barrier")
g0 = vT + 8
e(f"v_lshlrev_b32 v{g0+7}, 2, v0")
for w in range(4):
    e(f"ds_read_b32 v{g0+w}, v{g0+7} offset:{L_R - MISC + w*1024 + 0}" if False else f"ds_read_b32 v{g0+w}, v{aT8} offset:{w*1024}") if False else None
e(f"v_add_u32 v{g0+7}, {L_R}, v{g0+7}")
for w in range(4):
    e(f"ds_read_b32 v{g0+w}, v{g0+7} offset:{w*1024}")
e(f"v_and_b32 v{g0+6}, 127, v0"); e(f"v_lshlrev_b32 v{g0+6}, 3, v{g0+6}")
e(f"v_lshrrev_b32 v{g0+5}, 7, v0"); e(f"v_lshl_add_u32 v{g0+6}, v{g0+5}, 13, v{g0+6}")
e("s_waitcnt lgkmcnt(0)")
e(f"v_add_f32 v{g0}, v{g0}, v{g0+1}"); e(f"v_add_f32 v{g0+2}, v{g0+2}, v{g0+3}")
e(f"v_add_f32 v{g0}, v{g0}, v{g0+2}"); e(f"v_mov_b32 v{g0+1}, v{vTAG}")
e.vmem(f"buffer_store_dwordx2 {vr(g0,2)}, v{g0+6}, {srd('ws')}, s{sQP} offen{ST}", "st")
stamp()
top_up(0)
proj_tile(1, 1)
top_up(1)
proj_mfma(1, vXG)
proj_write(1)
proj_tile(2, 2)
QR = vS
aQR = vA + 5
e(f"v_and_b32 v{aQR}, 31, v{vLANE}")
e(f"v_lshrrev_b32 v{g0}, 2, v{aQR}"); e(f"v_and_b32 v{aQR}, 3, v{aQR}")
e(f"v_lshlrev_b32 v{aQR}, 4, v{aQR}"); e(f"v_lshl_add_u32 v{aQR}, v{g0}, 10, v{aQR}")
qr_loads = [f"buffer_load_dwordx4 {vr(QR,4)}, v{aQR}, {srd('ws')}, s{sQPR} offen{LD}"]
gather(qr_loads, "qr")
top_up(2)
proj_mfma(2, vXG)
proj_write(2)
e("s_waitcnt lgkmcnt(0)")
e("s_barrier")
e(f"s_lshr_b32 s{sT}, s{sW}, 1"); e(f"s_lshl_b32 s{sT}, s{sT}, 12"); e(f"s_and_b32 s{sT+1}, s{sW}, 1")
e(f"s_lshl_b32 s{sT+1}, s{sT+1}, 9"); e(f"s_add_u32 s{sT}, s{sT}, s{sT+1}"); e(f"s_add_u32 s{sT}, s{sT}, {L_R + 4096}")
e(f"v_lshlrev_b32 v{g0+12}, 3, v{vLANE}"); e(f"v_add_u32 v{g0+12}, s{sT}, v{g0+12}")
for w in range(4):
    e(f"ds_read_b64 {vr(g0+2*w,2)}, v{g0+12} offset:{w*1024}")
e(f"v_lshlrev_b32 v{g0+13}, 4, v{N_}"); e(f"v_lshl_add_u32 v{g0+13}, v{G_}, 13, v{g0+13}")
e("s_waitcnt lgkmcnt(0)")
e(f"v_pk_add_f32 {vr(g0,2)}, {vr(g0,2)}, {vr(g0+2,2)}"); e(f"v_pk_add_f32 {vr(g0+4,2)}, {vr(g0+4,2)}, {vr(g0+6,2)}")
e(f"v_pk_add_f32 {vr(g0,2)}, {vr(g0,2)}, {vr(g0+4,2)}")
e(f"v_mov_b32 v{g0+2}, v{g0+1}"); e(f"v_mov_b32 v{g0+1}, v{vTAG}"); e(f"v_mov_b32 v{g0+3}, v{vTAG}")
e.vmem(f"buffer_store_dwordx4 {vr(g0,4)}, v{g0+13}, {srd('ws')}, s{sGUP} offen{ST}", "st")
stamp()

HG = vFR
def compute_h():
    e(f"v_add_u32 v{g0+1}, {L_H}, v{aN272}")
    for m in range(2):
        for u in range(2):
            e(f"ds_read_b128 {vr(HG + 8*m + 4*u, 4)}, v{g0+1} offset:{m*128 + u*64}")
    e("s_waitcnt lgkmcnt(0)")
    for i in range(16):
        row_sum(HG + i, (2, 4, 8))
    for i in range(8):
        bf16_round_pair(g0 + i, HG + 2*i, HG + 2*i + 1)
        unpack(g0 + i, HG + 2*i, HG + 2*i + 1)
    e(f"s_mov_b32 s{sT}, 0xbfb8aa3b")
    for i in range(8):
        e(f"v_mul_f32 v{g0+i}, s{sT}, v{HG+i}")
    for i in range(8):
        e(f"v_exp_f32 v{g0+i}, v{g0+i}")
    for i in range(8):
        e(f"v_add_f32 v{g0+i}, 1.0, v{g0+i}")
    for i in range(8):
        e(f"v_rcp_f32 v{g0+i}, v{g0+i}")
    for i in range(8):
        e(f"v_mul_f32 v{HG+i}, v{HG+i}, v{g0+i}")
    for i in range(4):
        bf16_round_pair(g0 + i, HG + 2*i, HG + 2*i + 1)
        unpack(g0 + i, HG + 2*i, HG + 2*i + 1)
    for i in range(8):
        e(f"v_mul_f32 v{HG+i}, v{HG+i}, v{HG+8+i}")
    for i in range(4):
        bf16_round_pair(vH + i, HG + 2*i, HG + 2*i + 1)

def k_tile(idx):
    n = idx - 3; slot = idx % 4
    wait_tile(idx)
    for u in range(2):
        for s in range(4):
            e(f"ds_read_b128 {ar(n*32 + u*16 + s*4, 4)}, v{vKR+s} offset:{slot*8192 + u*4096}")
    e("s_waitcnt lgkmcnt(0)")
GU = vS + 8
QG = vS + 16
gu_loads = [f"buffer_load_dwordx4 {vr(GU+4*m,4)}, v{aT16}, {srd('ws')}, s{sGUC} offen offset:{0}" .replace("offset:0", "") + (f" offset:{4095}" if False else "") for m in range(1)]
sGUC2 = 83
e(f"s_add_u32 s{sGUC2}, s{sGUC}, 4096")
gu_loads = [f"buffer_load_dwordx4 {vr(GU,4)}, v{aT16}, {srd('ws')}, s{sGUC} offen{LD}",
            f"buffer_load_dwordx4 {vr(GU+4,4)}, v{aT16}, {srd('ws')}, s{sGUC2} offen{LD}"]
qg_loads = [f"buffer_load_dwordx4 {vr(QG,4)}, v{aT16}, {srd('ws')}, s{sQFR} offen{LD}"]
HS = CFG["HS"]; vQH = vS + 32
def half_exec(h):
    if h == 0: e("s_mov_b32 exec_lo, 0x00ff00ff"); e("s_mov_b32 exec_hi, 0x00ff00ff")
    elif h == 1: e("s_not_b64 exec, exec")
    else: e("s_mov_b64 exec, -1")
for idx in range(3, 11):
    if idx == 10 and HS:
        for i in range(16): e(f"v_mov_b32 v{vQ+i}, 0"); e(f"v_mov_b32 v{vQH+i}, 0")
        for i in range(32): e(f"v_mov_b32 v{vP+i}, 0")
    k_tile(idx)
    if idx == CFG["H3_AT"]: gather(gu_loads, "gu")
    if idx == CFG["QG_AT"]: gather(qg_loads, "qg")
    if idx != CFG["QR_CHK"]: top_up(idx)
    if idx == CFG["QR_CHK"]:
        e.wait_vm("qr")
        check_tags([QR+1, QR+3], qr_loads, g0, g0+1)
        for r in (QR, QR+2):
            row_sum(r, (4, 8))
            swap_red(r, g0, 16)
        e(f"v_cvt_pk_bf16_f32 v{g0}, v{QR}, v{QR+2}")
        e(f"v_mov_b32 v{g0+1}, v{vTAG}")
        e(f"v_lshlrev_b32 v{g0+2}, 3, v{vLANE}"); e(f"v_mov_b32 v{g0+3}, {OOB}")
        e(f"v_cmp_gt_u32 vcc, 4, v{vLANE}")
        e(f"v_cndmask_b32 v{g0+2}, v{g0+3}, v{g0+2}, vcc")
        e.vmem(f"buffer_store_dwordx2 {vr(g0,2)}, v{g0+2}, {srd('ws')}, s{sQF} offen{ST}", "st")
        stamp()
        top_up(idx)
stamp()
if CFG["SPR"] == 3: top_up(10, 3)
e.wait_vm("gu", "qg")
check_tags([GU+1, GU+3, GU+5, GU+7, QG+1, QG+3], gu_loads + qg_loads, g0, g0+1)
e(f"v_lshrrev_b32 v{g0}, 5, v0"); e(f"v_mul_u32_u24 v{g0}, 272, v{g0}"); e(f"v_and_b32 v{g0+1}, 31, v0")
e(f"v_lshl_add_u32 v{g0}, v{g0+1}, 3, v{g0}"); e(f"v_add_u32 v{g0}, {L_Q}, v{g0}")
e(f"v_mov_b32 v{QG+1}, v{QG+2}")
e(f"ds_write_b64 v{g0}, {vr(QG,2)}")
e(f"v_lshrrev_b32 v{g0+2}, 4, v0"); e(f"v_mul_u32_u24 v{g0+2}, 272, v{g0+2}")
e(f"v_lshl_add_u32 v{g0+2}, v{N_}, 3, v{g0+2}"); e(f"v_add_u32 v{g0+2}, {L_H}, v{g0+2}")
for m in range(2):
    e(f"v_mov_b32 v{GU+4*m+1}, v{GU+4*m+2}")
    e(f"ds_write_b64 v{g0+2}, {vr(GU+4*m,2)} offset:{128*m}")
e("s_waitcnt lgkmcnt(0)")
e("s_barrier")
e(f"v_and_b32 v{g0}, 7, v{N_}"); e(f"v_mul_u32_u24 v{g0}, 272, v{g0}"); e(f"v_lshl_add_u32 v{g0}, v{G_}, 4, v{g0}")
e(f"v_add_u32 v{g0}, {L_Q}, v{g0}")
if HS:
    for h in range(2):
        half_exec(h)
        for s in range(4):
            e(f"ds_read_b128 {vr((vQH if h else vQ)+4*s,4)}, v{g0} offset:{s*64}")
    half_exec(2)
else:
    for s in range(4):
        e(f"ds_read_b128 {vr(vQ+4*s,4)}, v{g0} offset:{s*64}")
e("s_waitcnt lgkmcnt(0)")
if CFG["SPR"] == 2: top_up(10, 3)
for s in range(4):
    for T in range(8):
        for u in range(2):
            if HS:
                d = vr(vS + (T & 3)*8 + u*4, 4)
                e(f"v_mfma_f32_16x16x32_bf16 {d}, {ar(T*32 + u*16 + s*4, 4)}, {vr((vQH if T >= 4 else vQ)+4*s,4)}, {'0' if s == 0 and T < 4 else d}")
            else:
                d = vr(vS + T*8 + u*4, 4)
                e(f"v_mfma_f32_16x16x32_bf16 {d}, {ar(T*32 + u*16 + s*4, 4)}, {vr(vQ+4*s,4)}, {'0' if s == 0 else d}")
stamp()
if CFG["SPR"]: top_up(10, q4=CFG["SP3"] if CFG["SPR"] == 1 else 16)
tp = vFR
NP = 16 if HS else 32
CH = NP // 2
for i in range(NP):
    bf16_round_pair(tp + i, vS + 2*i, vS + 2*i + 1)
for i in range(NP):
    unpack(tp + i, vS + 2*i, vS + 2*i + 1)
for i in range(NP):
    e(f"v_pk_mul_f32 {vr(vS+2*i,2)}, {vr(vS+2*i,2)}, s[{sSCALE}:{sSCALE+1}]")
for i in range(NP):
    bf16_round_pair(tp + i, vS + 2*i, vS + 2*i + 1)
for i in range(NP):
    unpack(tp + i, vS + 2*i, vS + 2*i + 1)
vM, vL = vA + 6, vA + 7
for c in range(4):
    e(f"v_max3_f32 v{g0+c}, v{vS+CH*c}, v{vS+CH*c+1}, v{vS+CH*c+2}")
for i in range((CH - 4) // 2):
    for c in range(4):
        e(f"v_max3_f32 v{g0+c}, v{g0+c}, v{vS+CH*c+3+2*i}, v{vS+CH*c+4+2*i}")
for c in range(4):
    e(f"v_max_f32 v{g0+c}, v{g0+c}, v{vS+CH*c+CH-1}")
e(f"v_max3_f32 v{g0}, v{g0}, v{g0+1}, v{g0+2}"); e(f"v_max_f32 v{vM}, v{g0}, v{g0+3}")
if CFG["SPR"]: top_up(10, q4=CFG["SP4"])
swap_red(vM, g0, 32, "max_f32"); swap_red(vM, g0, 16, "max_f32")
if HS: row_sum(vM, (8,), "max_f32")
e(f"v_mul_f32 v{vM}, s{sL2E}, v{vM}")
e(f"v_sub_f32 v{g0}, 0, v{vM}"); e(f"v_mov_b32 v{g0+1}, v{g0}")
for i in range(NP):
    e(f"v_pk_fma_f32 {vr(vS+2*i,2)}, {vr(vS+2*i,2)}, s[{sL2E}:{sL2E+1}], {vr(g0,2)}")
for i in range(2*NP):
    e(f"v_exp_f32 v{vS+i}, v{vS+i}")
if HS:
    for h in range(2):
        half_exec(h)
        for i in range(NP):
            bf16_round_pair(vP + 16*h + i, vS + 2*i, vS + 2*i + 1)
    half_exec(2)
else:
    for i in range(32):
        bf16_round_pair(vP + i, vS + 2*i, vS + 2*i + 1)
for c in range(4):
    e(f"v_pk_add_f32 {vr(g0+2*c,2)}, {vr(vS+CH*c,2)}, {vr(vS+CH*c+2,2)}")
for i in range(2, CH // 2):
    for c in range(4):
        e(f"v_pk_add_f32 {vr(g0+2*c,2)}, {vr(g0+2*c,2)}, {vr(vS+CH*c+2*i,2)}")
e(f"v_pk_add_f32 {vr(g0,2)}, {vr(g0,2)}, {vr(g0+2,2)}"); e(f"v_pk_add_f32 {vr(g0+4,2)}, {vr(g0+4,2)}, {vr(g0+6,2)}")
e(f"v_pk_add_f32 {vr(g0,2)}, {vr(g0,2)}, {vr(g0+4,2)}"); e(f"v_add_f32 v{vL}, v{g0}, v{g0+1}")
swap_red(vL, g0, 32); swap_red(vL, g0, 16)
if HS: row_sum(vL, (8,))
stamp()
hd = g0 + 2
SUB = g0 + 10
aOG, aML1, aML2 = g0 + 11, g0 + 12, g0 + 13
aF = vA + 5
aFG = g0 + 10
def addr_merge1():
    e(f"v_and_b32 v{g0}, 7, v{N_}"); e(f"v_mul_u32_u24 v{g0}, 528, v{g0}"); e(f"v_lshl_add_u32 v{g0}, v{G_}, 4, v{g0}")
    e(f"v_add_u32 v{g0}, s{sRING}, v{g0}")
    e(f"s_lshl_b32 s{sT}, s{sW}, 6"); e(f"s_add_u32 s{sT}, s{sT}, {L_ML}")
    e(f"v_lshlrev_b32 v{g0+1}, 3, v{N_}"); e(f"v_add_u32 v{g0+1}, s{sT}, v{g0+1}")
def addr_merge2():
    e(f"v_lshrrev_b32 v{hd}, 5, v{vLANE}"); e(f"s_lshl_b32 s{sT}, s{sW}, 1"); e(f"v_add_u32 v{hd}, s{sT}, v{hd}")
    e(f"v_and_b32 v{g0+5}, 31, v{vLANE}"); e(f"v_lshlrev_b32 v{g0+5}, 4, v{g0+5}")
    e(f"v_mul_u32_u24 v{g0+4}, 528, v{hd}"); e(f"v_add_u32 v{g0+3}, v{g0+5}, v{g0+4}")
    e(f"v_lshlrev_b32 v{g0+4}, 3, v{hd}"); e(f"v_add_u32 v{g0+4}, {L_ML}, v{g0+4}")
    e(f"v_lshl_add_u32 v{g0+5}, v{hd}, 9, v{g0+5}")
    e(f"v_lshlrev_b32 v{g0+6}, 9, v{hd}"); e(f"v_mov_b32 v{g0+7}, {OOB}")
    e(f"v_and_b32 v{g0+8}, 31, v{vLANE}"); e(f"v_cmp_eq_u32 vcc, 0, v{g0+8}")
    e(f"v_cndmask_b32 v{g0+6}, v{g0+7}, v{g0+6}, vcc")
    e(f"v_add_u32 v{g0+7}, 0x8000, v{g0+3}"); e(f"v_add_u32 v{g0+8}, 0x10000, v{g0+3}"); e(f"v_add_u32 v{g0+9}, 0x18000, v{g0+3}")
def addr_gather():
    e(f"v_lshrrev_b32 v{SUB}, 1, v{N_}")
    e(f"s_lshr_b32 s{sT}, s{sR5}, 5")
    e(f"s_lshr_b32 s{sT+1}, s{sR5}, 2"); e(f"s_and_b32 s{sT+1}, s{sT+1}, 7")
    e(f"s_and_b32 s{sT+2}, s{sR5}, 3")
    e(f"s_lshl_b32 s{sT+3}, s{sT}, 17"); e(f"s_lshl_b32 s{sT+4}, s{sW}, 15"); e(f"s_add_u32 s{sT+3}, s{sT+3}, s{sT+4}")
    e(f"s_lshl_b32 s{sT+4}, s{sT+1}, 9"); e(f"s_add_u32 s{sT+3}, s{sT+3}, s{sT+4}")
    e(f"s_lshl_b32 s{sT+4}, s{sT+2}, 7"); e(f"s_add_u32 s{sT+3}, s{sT+3}, s{sT+4}"); e(f"s_add_u32 s{sOC}, s{sT+3}, {WS_O}")
    e(f"v_lshlrev_b32 v{aOG}, 19, v{B_}"); e(f"v_lshl_add_u32 v{aOG}, v{SUB}, 12, v{aOG}"); e(f"v_lshl_add_u32 v{aOG}, v{G_}, 4, v{aOG}")
    e(f"s_lshl_b32 s{sT+3}, s{sT}, 12"); e(f"s_lshl_b32 s{sT+4}, s{sT+1}, 9"); e(f"s_add_u32 s{sT+3}, s{sT+3}, s{sT+4}")
    e(f"s_add_u32 s{sT+5}, s{sT+3}, {WS_ML}")
    e(f"s_lshl_b32 s{sT+4}, s{sW}, 7"); e(f"s_add_u32 s{sT+6}, s{sT+5}, s{sT+4}")
    e(f"v_lshlrev_b32 v{aML2}, 14, v{B_}"); e(f"v_lshl_add_u32 v{aML2}, v{SUB}, 4, v{aML2}")
    e(f"v_lshl_add_u32 v{aML1}, v{G_}, 7, v{aML2}")
def addr_f():
    e(f"v_lshlrev_b32 v{aF}, 15, v{SUB}"); e(f"v_lshl_add_u32 v{aF}, v{B_}, 6, v{aF}"); e(f"v_lshl_add_u32 v{aF}, v{G_}, 4, v{aF}")
    e(f"s_lshl_b32 s{sFP}, s{sHALF}, 20"); e(f"s_lshl_b32 s{sFC}, s{sW}, 18"); e(f"s_add_u32 s{sFP}, s{sFP}, s{sFC}")
    e(f"s_lshl_b32 s{sFC}, s{sR5}, 8"); e(f"s_add_u32 s{sFP}, s{sFP}, s{sFC}"); e(f"s_add_u32 s{sFP}, s{sFP}, {WS_F}")
def addr_final():
    e(f"s_and_b32 s{sT}, s2, 1"); e(f"s_lshr_b32 s{sT+1}, s2, 2"); e(f"s_bfe_u32 s{sT+4}, s2, {(1 << 16) | 1}")
    e(f"s_lshl_b32 s{sT+2}, s{sT+1}, 15"); e(f"s_lshl_b32 s{sT+3}, s{sT}, 6"); e(f"s_add_u32 s{sT+2}, s{sT+2}, s{sT+3}")
    e(f"s_lshl_b32 s{sT+3}, s{sT+4}, 5"); e(f"s_add_u32 s{sT+2}, s{sT+2}, s{sT+3}"); e(f"s_add_u32 s{sT+2}, s{sT+2}, {WS_F}")
    e(f"v_lshrrev_b32 v{aFG}, 1, v0"); e(f"v_lshlrev_b32 v{aFG}, 8, v{aFG}")
    e(f"v_and_b32 v{g0+9}, 1, v0"); e(f"v_lshl_add_u32 v{aFG}, v{g0+9}, 4, v{aFG}")
for idx in range(11, 19):
    T = idx - 11; ab = (T & 1) * 32
    if idx == 18 and CFG["HO"]:
        addr_gather(); addr_f(); addr_merge1(); addr_merge2()
    wait_tile(idx)
    read_wfrags(idx, ab, agpr=True)
    e("s_waitcnt lgkmcnt(0)")
    if idx == 18 and CFG["LATE"] == 4: LIM[0] = 19
    top_up(idx, CFG["VA"] or None)
    for db in range(8):
        d = vr(vACC + 4*db, 4)
        e(f"v_mfma_f32_16x16x32_bf16 {d}, {ar(ab + 4*db, 4)}, {vr(vP + 4*T, 4)}, {'0' if T == 0 else d}")
    if T == CFG["H_AT"]: compute_h()
stamp()
if HS:
    for i in range(32): row_sum(vACC + i, (8,))
OSLOT = (18 % 4) * 8192
if not CFG["HO"]: addr_merge1()
e(f"s_mov_b64 s[{sEX}:{sEX+1}], exec")
e("s_mov_b32 exec_lo, 0x00ff00ff"); e("s_mov_b32 exec_hi, 0x00ff00ff")
for db in range(8):
    e(f"ds_write_b128 v{g0}, {vr(vACC+4*db,4)} offset:{OSLOT + db*64}")
e("s_mov_b32 exec_lo, 0x000000ff"); e("s_mov_b32 exec_hi, 0")
e(f"ds_write_b64 v{g0+1}, {vr(vM,2)}")
e(f"s_mov_b64 exec, s[{sEX}:{sEX+1}]")
if not CFG["HO"]: addr_merge2()
e("s_waitcnt lgkmcnt(0)")
if CFG["FINE2"]: stamp()
e("s_barrier")
if CFG["FINE2"]: stamp()
MO = vS
for w in range(4):
    e(f"ds_read_b64 {vr(MO+16+2*w,2)}, v{g0+4} offset:{w*64}")
for w, a in enumerate((g0+3, g0+7, g0+8, g0+9)):
    e(f"ds_read_b128 {vr(MO+4*w,4)}, v{a} offset:{OSLOT}")
e("s_waitcnt lgkmcnt(4)")
mm = MO + 24
e(f"v_max3_f32 v{mm}, v{MO+16}, v{MO+18}, v{MO+20}"); e(f"v_max_f32 v{mm}, v{mm}, v{MO+22}")
for w in range(4):
    e(f"v_sub_f32 v{MO+16+2*w}, v{MO+16+2*w}, v{mm}")
for w in range(4):
    e(f"v_exp_f32 v{MO+16+2*w}, v{MO+16+2*w}")
e(f"v_mul_f32 v{mm+2}, v{MO+16}, v{MO+17}")
for w in range(1, 4):
    e(f"v_fma_f32 v{mm+2}, v{MO+16+2*w}, v{MO+17+2*w}, v{mm+2}")
e(f"v_mov_b32 v{mm+1}, v{vTAG}"); e(f"v_mov_b32 v{mm+3}, v{vTAG}")
e("s_waitcnt lgkmcnt(0)")
og = MO + 28
for k in range(4):
    e(f"v_mul_f32 v{og+k}, v{MO+16}, v{MO+k}")
for w in range(1, 4):
    for k in range(4):
        e(f"v_fma_f32 v{og+k}, v{MO+16+2*w}, v{MO+4*w+k}, v{og+k}")
embed(og, og)
e.vmem(f"buffer_store_dwordx4 {vr(og,4)}, v{g0+5}, {srd('ws')}, s{sOP} offen{ST}", "st")
e.vmem(f"buffer_store_dwordx4 {vr(mm,4)}, v{g0+6}, {srd('ws')}, s{sMLP} offen{ST}", "st")
if CFG["LATE"] in (1, 2, 4):
    LIM[0] = 20; top_up(18, 2)
stamp()
if not CFG["HO"]: addr_gather()
OG = vS + 40
o_loads = [f"buffer_load_dwordx4 {vr(OG+4*u,4)}, v{aOG}, {srd('ws')}, s{sOC} offen offset:{64*u}{LD}".replace(" offset:0", "") for u in range(2)]
o_loads += [f"buffer_load_dwordx4 {vr(OG+16,4)}, v{aML1}, {srd('ws')}, s{sT+5} offen{LD}",
            f"buffer_load_dwordx4 {vr(OG+20,4)}, v{aML2}, {srd('ws')}, s{sT+6} offen{LD}"]
if CFG["ACK"] & 2: e.wait_vm("st")
gather(o_loads, "og", 2)
if CFG["LATE"] == 3:
    LIM[0] = 20; top_up(18, 2)
FA, FB = vFR + 8, vFR + 12
def select_F(F, vACC=vACC):
    e(f"s_mov_b64 s[{sEX}:{sEX+1}], exec")
    e("s_mov_b32 exec_lo, 0x00030003"); e("s_mov_b32 exec_hi, 0x00030003")
    for db in range(8):
        for r in range(4):
            e(f"v_mov_b32 v{F + r}, v{vACC + 4*db + r}")
        if db < 7: e("s_lshl_b64 exec, exec, 2")
    e(f"s_mov_b64 exec, s[{sEX}:{sEX+1}]")
    embed(F, F)
if not CFG["HO"]: addr_f()
if not CFG["ORD"]:
    wait_tile(19)
    read_wfrags(19, 64, agpr=True)
    e("s_waitcnt lgkmcnt(0)")
    for db in range(8):
        e(f"v_mfma_f32_16x16x32_bf16 {vr(vACC+4*db,4)}, {ar(64+4*db,4)}, {vr(vH,4)}, 0")
    select_F(FB)
    wait_tile(20)
    read_wfrags(20, 96, agpr=True)
stamp()
e.wait_vm("og")
if CFG["FINE2"]: stamp()
check_tags([OG+16+k for k in (1, 3, 5, 7)], o_loads, g0, g0+1, emb=(OG, OG+4), tmp=g0+2)
if CFG["FINE2"]: stamp()
gm = g0
e(f"v_mov_b32 v{gm}, v{OG+16}")
row_sum(gm, (2, 4, 8), "max_f32")
swap_red(gm, g0+1, 16, "max_f32"); swap_red(gm, g0+1, 32, "max_f32")
e(f"v_sub_f32 v{g0+2}, v{OG+16}, v{gm}"); e(f"v_sub_f32 v{g0+3}, v{OG+20}, v{gm}")
e(f"v_exp_f32 v{g0+2}, v{g0+2}"); e(f"v_exp_f32 v{g0+3}, v{g0+3}")
for i in range(8): e(f"v_and_b32 v{OG+i}, s{sM24}, v{OG+i}")
e(f"v_mul_f32 v{g0+2}, v{g0+2}, v{OG+18}")
OV = vS
for i in range(8):
    e(f"v_mul_f32 v{OV + i}, v{g0+3}, v{OG + i}")
for r in (2, 4, 8):
    for i in range(8):
        row_sum(OV + i, (r,))
    row_sum(g0+2, (r,))
e(f"s_lshl_b32 s{sT}, s{sW}, 8"); e(f"s_add_u32 s{sT}, s{sT}, {L_O2}")
e(f"v_lshlrev_b32 v{g0+5}, 7, v{B_}"); e(f"v_lshl_add_u32 v{g0+5}, v{G_}, 5, v{g0+5}")
e(f"v_add_u32 v{g0+6}, s{sT}, v{g0+5}"); e(f"v_add_u32 v{g0+5}, {L_O2}, v{g0+5}")
e(f"s_mov_b64 s[{sEX}:{sEX+1}], exec")
e("s_mov_b32 exec_lo, 0x00030003"); e("s_mov_b32 exec_hi, 0x00030003")
e(f"ds_write_b128 v{g0+6}, {vr(OV,4)}"); e(f"ds_write_b128 v{g0+6}, {vr(OV+4,4)} offset:16")
e(f"s_mov_b64 exec, s[{sEX}:{sEX+1}]")
swap_red(g0+2, g0+1, 16); swap_red(g0+2, g0+1, 32)
e(f"v_rcp_f32 v{g0+4}, v{g0+2}")
e(f"v_fma_f32 v{g0+7}, -v{g0+2}, v{g0+4}, 1.0"); e(f"v_fma_f32 v{g0+4}, v{g0+7}, v{g0+4}, v{g0+4}")
e("s_waitcnt lgkmcnt(0)")
if CFG["FINE2"]: stamp()
e("s_barrier")
if CFG["FINE2"]: stamp()
for w in range(4):
    for u in range(2):
        e(f"ds_read_b128 {vr(OV + 8 + 8*w + 4*u, 4)}, v{g0+5} offset:{w*256 + u*16}")
e("s_waitcnt lgkmcnt(0)")
for i in range(0, 8, 2):
    a = OV + 8 + i
    e(f"v_pk_add_f32 {vr(a,2)}, {vr(a,2)}, {vr(a+8,2)}"); e(f"v_pk_add_f32 {vr(a+16,2)}, {vr(a+16,2)}, {vr(a+24,2)}")
    e(f"v_pk_add_f32 {vr(a,2)}, {vr(a,2)}, {vr(a+16,2)}")
for i in range(8):
    e(f"v_mul_f32 v{OV+8+i}, v{OV+8+i}, v{g0+4}")
for i in range(4):
    bf16_round_pair(vO + i, OV + 8 + 2*i, OV + 9 + 2*i)
if CFG["ORD"]:
    wait_tile(19)
    read_wfrags(19, 64, agpr=True)
    wait_tile(20)
    read_wfrags(20, 96, agpr=True)
    e("s_waitcnt lgkmcnt(0)")
    for db in range(8):
        e(f"v_mfma_f32_16x16x32_bf16 {vr(vP+4*db,4)}, {ar(64+4*db,4)}, {vr(vH,4)}, 0")
for db in range(8):
    e(f"v_mfma_f32_16x16x32_bf16 {vr(vACC+4*db,4)}, {ar(96+4*db,4)}, {vr(vO,4)}, 0")
if CFG["HO"]: addr_final()
if CFG["ORD"]: select_F(FB, vP)
select_F(FA)
e.vmem(f"buffer_store_dwordx4 {vr(FA,4)}, v{aF}, {srd('ws')}, s{sFP} offen{ST}", "st")
e.vmem(f"buffer_store_dwordx4 {vr(FB,4)}, v{aF}, {srd('ws')}, s{sFP} offen offset:128{ST}", "st")
stamp()
if CFG["ACK"] & 1:
    e.wait_all(); stamp()
if not CFG["HO"]: addr_final()
FG = vS
f_loads = [f"buffer_load_dwordx4 {vr(FG,4)}, v{aFG}, {srd('ws')}, s{sT+2} offen{LD}",
           f"buffer_load_dwordx4 {vr(FG+4,4)}, v{aFG}, {srd('ws')}, s{sT+2} offen offset:128{LD}"]
gather(f_loads, "fg", 1)
e(f"s_lshl_b32 s{sT}, s{sT}, 11"); e(f"s_lshl_b32 s{sT+1}, s{sT+1}, 5"); e(f"s_add_u32 s{sT}, s{sT}, s{sT+1}")
e(f"s_lshl_b32 s{sT+4}, s{sT+4}, 4"); e(f"s_add_u32 s{sT}, s{sT}, s{sT+4}")
e(f"v_and_b32 v{g0+8}, 7, v{vLANE}"); e(f"v_bfrev_b32 v{g0+8}, v{g0+8}"); e(f"v_lshrrev_b32 v{g0+8}, 28, v{g0+8}")
e.vmem(f"buffer_load_ushort v{g0+9}, v{g0+8}, {srd('x')}, s{sT} offen", "xr")
e(f"s_lshl_b32 s{sT+1}, s{sW}, 6"); e(f"s_add_u32 s{sT+1}, s{sT+1}, {L_FR}")
e(f"v_and_b32 v{g0+11}, 1, v{vLANE}"); e(f"v_lshl_add_u32 v{g0+11}, v{G_}, 1, v{g0+11}")
e(f"v_lshlrev_b32 v{g0+11}, 3, v{g0+11}"); e(f"v_add_u32 v{g0+11}, s{sT+1}, v{g0+11}")
e(f"v_and_b32 v{g0+12}, 7, v{vLANE}"); e(f"v_lshlrev_b32 v{g0+12}, 3, v{g0+12}"); e(f"v_add_u32 v{g0+12}, {L_FR}, v{g0+12}")
e.wait_vm("fg", "xr")
if CFG["FINE2"]: stamp()
check_tags([], f_loads, g0, g0+1, emb=(FG, FG+4), tmp=g0+2)
if CFG["FINE2"]: stamp()
for i in range(8): e(f"v_and_b32 v{FG+i}, s{sM24}, v{FG+i}")
for i in range(0, 8, 2): e(f"v_permlane32_swap_b32 v{FG+i}, v{FG+i+1}")
for i in range(0, 8, 2): e(f"v_add_f32 v{FG+i}, v{FG+i}, v{FG+i+1}")
for i in (0, 4): e(f"v_permlane16_swap_b32 v{FG+i}, v{FG+i+2}")
e(f"v_add_f32 v{FG}, v{FG}, v{FG+2}"); e(f"v_add_f32 v{FG+1}, v{FG+4}, v{FG+6}")
for r in (2, 4, 8):
    row_sum(FG, (r,)); row_sum(FG+1, (r,))
e("s_mov_b32 exec_lo, 0x00030003"); e("s_mov_b32 exec_hi, 0x00030003")
e(f"ds_write_b64 v{g0+11}, {vr(FG,2)}")
e("s_waitcnt lgkmcnt(0)")
e("s_barrier")
e(f"s_cmp_lg_u32 s{sW}, 0")
e("s_cbranch_scc1 FIN")
e("s_mov_b32 exec_lo, 0xff"); e("s_mov_b32 exec_hi, 0")
for w in range(4):
    e(f"ds_read_b64 {vr(FG+2+2*w,2)}, v{g0+12} offset:{w*64}")
e(f"v_lshlrev_b32 v{g0+4}, 16, v{g0+9}")
e("s_waitcnt lgkmcnt(0)")
a = FG + 2
e(f"v_pk_add_f32 {vr(a,2)}, {vr(a,2)}, {vr(a+2,2)}"); e(f"v_pk_add_f32 {vr(a+4,2)}, {vr(a+4,2)}, {vr(a+6,2)}")
e(f"v_pk_add_f32 {vr(a,2)}, {vr(a,2)}, {vr(a+4,2)}")
bf16_round_pair(g0+2, a, a+1); unpack(g0+2, a, a+1)
e(f"v_add_f32 v{a}, v{a}, v{g0+4}")
bf16_round_pair(g0+2, a, a); e(f"v_lshlrev_b32 v{a}, 16, v{g0+2}")
e(f"v_add_f32 v{a}, v{a}, v{a+1}")
bf16_round_pair(g0+2, a, a)
e(f"buffer_store_short v{g0+2}, v{g0+8}, {srd('out')}, s{sT} offen")
e("s_cmp_lg_u32 s2, 0")
e("s_cbranch_scc1 FIN")
e("s_mov_b32 exec_lo, 1")
e(f"v_mov_b32 v{g0+3}, 0")
e(f"buffer_store_dword v{vTAG}, v{g0+3}, {srd('ws')}, 0 offen{ST}")
e("FIN:")
if DBG:
    stamp()
    e("s_mov_b32 exec_lo, -1"); e("s_mov_b32 exec_hi, 0")
    e(f"s_lshl_b32 s{sT}, s2, 2"); e(f"s_add_u32 s{sT}, s{sT}, s{sW}"); e(f"s_lshl_b32 s{sT}, s{sT}, 7"); e(f"s_add_u32 s{sT}, s{sT}, {WS_DBG}")
    e(f"v_lshlrev_b32 v{g0+3}, 2, v{vLANE}")
    e(f"buffer_store_dword v255, v{g0+3}, {srd('ws')}, s{sT} offen")
e("s_endpgm")
body = list(e.lines)
for s in slow: body += s
body += ["DONE:", "s_endpgm", "CODE_END:"]
body, nn = fix_hazards(body)

hdr = open(os.path.join(os.path.dirname(os.path.abspath(__file__)), "..", "cdna_kernels", NAME + ".s.ref")).read().split("\n")
hdr = [l for l in hdr if l.startswith(";") and "@launch" not in l and "Override" not in l and "grid=ceil" not in l]
out = hdr + [f"; @launch grid=(256,1,1) block=(256,1,1) lds={LDS_BYTES}",
             '.amdgcn_target "amdgcn-amd-amdhsa--gfx950"', ".text", f".globl {NAME}_kernel", ".p2align 8",
             f".type {NAME}_kernel,@function", f"{NAME}_kernel:"]
out += [("" if l.endswith(":") else "    ") + l for l in body]
out += ['.section .rodata,"a"', ".p2align 6", f".amdhsa_kernel {NAME}_kernel",
        "  .amdhsa_next_free_vgpr 512", "  .amdhsa_next_free_sgpr 102", "  .amdhsa_accum_offset 256",
        "  .amdhsa_float_denorm_mode_32 3",
        "  .amdhsa_group_segment_fixed_size 0", "  .amdhsa_kernarg_size 96", "  .amdhsa_user_sgpr_count 2",
        "  .amdhsa_user_sgpr_kernarg_segment_ptr 1", "  .amdhsa_system_sgpr_workgroup_id_x 1", ".end_amdhsa_kernel", ""]
open(sys.argv[1], "w").write("\n".join(out))
print("lines", len(body), "nops inserted", nn, "lds", LDS_BYTES, "stamps", nstamp[0], file=sys.stderr)
```

```python
import sys, os
sys.path.insert(0, os.path.dirname(os.path.abspath(__file__)))
from asmlib import Emit, fix_hazards

NAME = "parallel_sum__gqa_block_cached__swiglu_ffn__decode"
CFG = dict(AHEAD=3, PRE=2, DBG=0, SPIN=30000, QR_AT=2, QR_CHK=5, H3_AT=4, QG_AT=7, FINE=0, PF=0, SPR=1, H_AT=2, FINE2=0, STM=1, ACK=0, TLB=0, ROT=0, LDM=0, QFLIP=0, FS=0, FT=0, JROT=0, LATE=0, VA=0, ORD=0, JG=0, JU=0, GX=0, GS=0, HO=0, HS=0, E0=0, AH2=0, AH4=0, AHV=0, AHW=0, SP3=12, SP4=16, PQ=4, WQ=2, GL=0)
for a in sys.argv[2:]:
    k, v = a.split("="); CFG[k] = int(v, 0)
AHEAD = CFG["AHEAD"]; DBG = CFG["DBG"]
ST = {0: " sc0 sc1", 1: " sc1", 2: " sc1 nt", 3: " sc0 sc1 nt"}[CFG["STM"]]

LD = {0: " sc1", 1: " sc0 sc1", 2: " sc1 nt", 3: " sc0 sc1 nt"}[CFG["LDM"]]
WS_QP, WS_QF, WS_GU, WS_O, WS_ML, WS_F = 0x10000, 0x90000, 0x100000, 0x200000, 0x400000, 0x480000
WS_DBG = 0x1000000
WS_NUM = 0x2000000 if DBG else 0x1000000
OOB = 0x7ff00000
MISC = 131072
L_R = MISC
L_Q = MISC + 12288
L_H = L_Q + 2176 + 128
L_ML = L_H + 4352
L_O2 = L_ML + 256
L_FR = L_O2 + 1024
LDS_BYTES = L_FR + 256
LDS_BYTES = (LDS_BYTES + 1023) // 1024 * 1024
sW, sGRP, sHI, sR5, sHALF = 3, 4, 5, 6, 7
SRD = dict(K=8, V=12, wq=16, wg=20, wu=24, wo=28, wd=32, ws=36, x=40, out=44)
sTAG, sRING, sKV, sSO = 48, 49, 50, 51
sWQ, sWG, sWO = 86, 87, 88
sGG = 100
sWU, sJG, sJU = 62, 63, 99
sT = 90
sSCALE = 64
sL2E = 66
sMASK = 68
sCNT = 69
sEX = 70
sQP, sQPR, sQF, sQFR, sGUP, sGUC, sOP, sMLP, sOC, sFP, sFC = 72, 73, 74, 75, 76, 77, 78, 79, 80, 81, 82
sSEL, sCK, sM24 = 52, 56, 58
sSTAMP = 84
vTID, vLANE = 0, 1
vKD, vVD, vKR, vTR = 2, 6, 8, 12
vWQD, vWGD, vWOD = 20, 22, 24
vXN, vH, vO = 26, 30, 34
vTAG = 38
vQ = 40
vA = 56
vS, vP, vACC, vFR, vT = 64, 128, 160, 192, 224

e = Emit()
slow = []
nstamp = [0]
def stamp():
    if DBG:
        e(f"s_memrealtime s[{sSTAMP}:{sSTAMP+1}]")
        e("s_waitcnt lgkmcnt(0)")
        e(f"v_writelane_b32 v255, s{sSTAMP}, {nstamp[0]}")
        nstamp[0] += 1
def srd(n): return f"s[{SRD[n]}:{SRD[n]+3}]"
def vr(a, n=1): return f"v{a}" if n == 1 else f"v[{a}:{a+n-1}]"
def ar(a, n=1): return f"a{a}" if n == 1 else f"a[{a}:{a+n-1}]"

TILES = ["wq", "wg", "wu"] + [f"K{i}" for i in range(8)] + [f"V{i}" for i in range(8)] + ["wd", "wo"]
issued = [0]
LIM = [{0: 20, 1: 19, 2: 18, 3: 18, 4: 18, 6: 18, 7: 18}[CFG["LATE"]]]
def issue_unit(un, cont=False):
    idx = un >> 2; q = un & 3
    t = TILES[idx]; slot = idx % 4; tag = ("tile", idx)
    if t[0] in "KV":
        n = int(t[1]); rs = srd(t[0]); h = q >> 1
        if not (cont and (q & 1)):
            e(f"s_add_u32 m0, s{sRING}, {slot*8192 + h*4096}")
            e(f"s_add_u32 s{sSO}, s{sKV}, {n*32768 + h*4096}")
        for jj in (2*(q & 1), 2*(q & 1) + 1):
            v = vKD + jj if t[0] == "K" else vVD + (jj & 1)
            off = f" offset:{jj*1024}" if jj else ""
            e.vmem(f"buffer_load_dwordx4 v{v}, {rs}, s{sSO} offen{off} nt lds", tag)
    else:
        pitch, vb, sb = {"wq": (8192, vWQD, sWQ), "wg": (7168, vWGD, sWG), "wu": (7168, vWGD, sWU),
                         "wo": (2048, vWOD, sWO), "wd": (2048, vWOD, sWO)}[t]
        p = q
        e(f"s_add_u32 m0, s{sRING}, {slot*8192 + p*2048}")
        e(f"s_add_u32 s{sSO}, s{sb}, {8*p*pitch}")
        e.vmem(f"buffer_load_dwordx4 v{vb}, {srd(t)}, s{sSO} offen nt lds", tag)
        e.vmem(f"buffer_load_dwordx4 v{vb+1}, {srd(t)}, s{sSO} offen offset:1024 nt lds", tag)
def issue_next():
    cont = False
    while issued[0] < 4*len(TILES):
        issue_unit(issued[0], cont); issued[0] += 1; cont = True
        if issued[0] % 4 == 0: break
def top_up(idx, ahead=None, q4=None):
    base = CFG["AH4"] or 2*CFG["AH2"] or 4*AHEAD
    if idx >= 11 and CFG["AHV"]: base = CFG["AHV"]
    if idx < 3 and CFG["AHW"]: base = CFG["AHW"]
    ah4 = q4 if q4 else (4*ahead if ahead else base)
    cont = False
    while issued[0] <= 4*LIM[0] + 3 and issued[0] <= 4*idx + 3 + ah4:
        issue_unit(issued[0], cont); issued[0] += 1; cont = True
def wait_tile(idx):
    e.wait_vm(("tile", idx))

def read_wfrags(idx, dst, agpr=False):
    slot = idx % 4
    for db in range(8):
        for u in range(2):
            r = dst + db*4 + u*2
            d = ar(r, 2) if agpr else vr(r, 2)
            e(f"ds_read_b64_tr_b16 {d}, v{vTR+db} offset:{slot*8192 + u*4096}")

gid = [0]
def embed(dst, src):
    for i in range(4): e(f"v_perm_b32 v{dst+i}, v{src+i}, v{vTAG}, s{sSEL+i}")
def check_tags(tagregs, reissue, t0, t1, emb=(), tmp=None):
    def chk(out):
        rs = list(tagregs)
        for j, gr in enumerate(emb):
            out(f"v_perm_b32 v{tmp+j}, v{gr+1}, v{gr}, s{sCK}")
            out(f"v_perm_b32 v{t0}, v{gr+3}, v{gr+2}, s{sCK+1}")
            out(f"v_or_b32 v{tmp+j}, v{tmp+j}, v{t0}")
            rs.append(tmp + j)
        if len(rs) == 1:
            out(f"v_cmp_ne_u32 vcc, s{sTAG}, v{rs[0]}")
            return
        for op, t in (("min", t0), ("max", t1)):
            r = list(rs)
            cur = None
            while r:
                if cur is None:
                    if len(r) >= 3:
                        out(f"v_{op}3_u32 v{t}, v{r[0]}, v{r[1]}, v{r[2]}"); r = r[3:]
                    else:
                        out(f"v_{op}_u32 v{t}, v{r[0]}, v{r[1]}"); r = r[2:]
                    cur = t
                elif len(r) >= 2:
                    out(f"v_{op}3_u32 v{t}, v{t}, v{r[0]}, v{r[1]}"); r = r[2:]
                else:
                    out(f"v_{op}_u32 v{t}, v{t}, v{r[0]}"); r = r[1:]
        out(f"v_xor_b32 v{t0}, s{sTAG}, v{t0}")
        out(f"v_xor_b32 v{t1}, s{sTAG}, v{t1}")
        out(f"v_or_b32 v{t0}, v{t0}, v{t1}")
        out(f"v_cmp_ne_u32 vcc, 0, v{t0}")
    g = gid[0]; gid[0] += 1
    chk(e)
    e(f"s_cbranch_vccnz SLOW{g}")
    e(f"BACK{g}:")
    s = []
    s.append(f"SLOW{g}:")
    s.append(f"s_mov_b32 s{sCNT}, {CFG['SPIN']}")
    s.append(f"LOOP{g}:")
    s.append("s_mov_b64 exec, vcc")
    s += reissue
    s.append("s_waitcnt vmcnt(0)")
    chk(s.append)
    s.append(f"s_cbranch_vccz OUT{g}")
    s.append(f"s_sub_u32 s{sCNT}, s{sCNT}, 1")
    s.append(f"s_cmp_lg_u32 s{sCNT}, 0")
    s.append(f"s_cbranch_scc1 LOOP{g}")
    s.append(f"OUT{g}:")
    s.append("s_mov_b64 exec, -1")
    if DBG:
        s.append(f"s_sub_u32 s{sCNT}, {CFG['SPIN'] + 1}, s{sCNT}")
        s.append(f"v_writelane_b32 v255, s{sCNT}, {27 + g}")
    s.append(f"s_branch BACK{g}")
    slow.append(s)

def gather(loads, tag, ft=0):
    for l in loads:
        if CFG["FT"] & ft: l = l.replace(LD, "")
        e.vmem(l, tag)

def bf16_round_pair(dst_pk, a, b):
    e(f"v_cvt_pk_bf16_f32 v{dst_pk}, v{a}, v{b}")
def unpack(pk, lo, hi):
    e(f"v_and_b32 v{hi}, s{sMASK}, v{pk}")
    e(f"v_lshlrev_b32 v{lo}, 16, v{pk}")
def row_sum(reg, rors, op="add_f32"):
    for r in rors:
        e(f"v_{op}_dpp v{reg}, v{reg}, v{reg} row_ror:{r} row_mask:0xf bank_mask:0xf")
def swap_red(reg, tmp, which, op="add_f32"):
    e(f"v_mov_b32 v{tmp}, v{reg}")
    e(f"v_permlane{which}_swap_b32 v{reg}, v{tmp}")
    e(f"v_{op} v{reg}, v{reg}, v{tmp}")

e(f"s_cmp_ge_u32 s2, 256")
e(f"s_cbranch_scc1 DONE")
e("s_load_dwordx16 s[52:67], s[0:1], 0")
e("s_load_dwordx8 s[68:75], s[0:1], 64")
if DBG: e("v_mov_b32 v255, 0")
stamp()
e(f"v_and_b32 v{vLANE}, 63, v0")
e(f"v_lshrrev_b32 v{vT}, 6, v0")
e(f"v_readfirstlane_b32 s{sW}, v{vT}")
e(f"s_and_b32 s{sGRP}, s2, 7")
if CFG["GX"]: e(f"s_xor_b32 s{sGRP}, s{sGRP}, {CFG['GX']}")
e(f"s_lshr_b32 s{sHI}, s2, 3")
e(f"s_and_b32 s{sHALF}, s{sHI}, 1")
e(f"s_lshr_b32 s{sR5}, s{sHI}, 1")
if CFG["ROT"] == 9:
    e(f"s_add_u32 s{sSO}, s{sGRP}, 1"); e(f"s_and_b32 s{sSO}, s{sSO}, 3"); e(f"s_lshl_b32 s{sSO}, s{sSO}, 1")
    e(f"s_lshr_b32 s{sR5+2}, s{sGRP}, 2"); e(f"s_add_u32 s{sSO}, s{sSO}, s{sR5+2}"); e(f"s_lshl_b32 s{sSO}, s{sSO}, 4")
elif CFG["ROT"]:
    e(f"s_add_u32 s{sSO}, s{sGRP}, {CFG['ROT']}"); e(f"s_and_b32 s{sSO}, s{sSO}, 7"); e(f"s_lshl_b32 s{sSO}, s{sSO}, 4")
else:
    e(f"s_lshl_b32 s{sSO}, s{sGRP}, 4")
e(f"s_add_u32 s{sR5}, s{sR5}, s{sSO}")
sJ = 89
e(f"s_add_u32 s{sJ}, s{sHI}, {CFG['JROT']}"); e(f"s_and_b32 s{sJ}, s{sJ}, 31")
if CFG["GS"]:
    e(f"s_lshr_b32 s{sT}, s{sHI}, 2"); e(f"s_xor_b32 s{sT}, s{sT}, s{sGRP}")
    if CFG["GS"] == 2: e(f"s_xor_b32 s{sT}, s{sT}, 1")
    e(f"s_and_b32 s{sT}, s{sT}, 1")
    e(f"s_cmp_ge_u32 s{sHI}, 24"); e(f"s_cselect_b32 s{sT}, s{sT}, 0")
    e(f"s_xor_b32 s{sGG}, s{sGRP}, s{sT}")
    e(f"s_lshl_b32 s{sT}, s{sT}, 2"); e(f"s_xor_b32 s{sJU}, s{sHI}, s{sT}")
N_, G_, B_ = vT, vT+1, vT+2
e(f"v_and_b32 v{N_}, 15, v{vLANE}")
e(f"v_lshrrev_b32 v{G_}, 4, v{vLANE}")
e(f"v_and_b32 v{B_}, 1, v{vLANE}")
e("s_waitcnt lgkmcnt(0)")
stamp()
ptr = dict(x=52, K=54, V=56, wq=58, wo=60, wg=64, wu=66, wd=68, out=70, ws=74)
size = dict(x=4096, K=64 << 20, V=64 << 20, wq=8 << 20, wo=8 << 20, wg=7 << 20, wu=7 << 20, wd=7 << 20, out=4096, ws=WS_NUM)
def mk_srd(*names):
    for n in names:
        b = SRD[n]
        e(f"s_mov_b64 s[{b}:{b+1}], s[{ptr[n]}:{ptr[n]+1}]")
        e(f"s_mov_b32 s{b+2}, {size[n]}")
        e(f"s_mov_b32 s{b+3}, 0x20000")
t = vT + 5
def wvoff(dst, pitch):
    for par in range(2):
        e(f"v_add_u32 v{t}, {4*par}, v{G_}")
        e(f"v_lshlrev_b32 v{t+1}, 1, v{t}")
        e(f"v_xor_b32 v{t+1}, v{t+1}, v{N_}")
        e(f"v_lshlrev_b32 v{t+1}, 4, v{t+1}")
        e(f"v_mul_u32_u24 v{t}, {pitch}, v{t}")
        e(f"v_add_u32 v{dst+par}, v{t}, v{t+1}")
        if par: e(f"v_subrev_u32 v{dst+par}, 1024, v{dst+par}")
mk_srd("x", "wq")
e(f"s_load_dword s{sTAG}, s[74:75], 0")
if CFG["TLB"] & 8:
    e(f"s_mul_i32 s98, s{sGRP}, {128*7168}")
    e(f"s_lshl_b32 s99, s{sGRP}, 23"); e(f"s_lshl_b32 s100, s{sHI}, 18"); e(f"s_add_u32 s99, s99, s100")
    e(f"s_load_dword s100, s[{ptr['wg']}:{ptr['wg']+1}], s98")
    e(f"s_load_dword s101, s[{ptr['K']}:{ptr['K']+1}], s99")
    e(f"s_load_dword s98, s[{ptr['wu']}:{ptr['wu']+1}], s98")
    if CFG["TLB"] & 16:
        e(f"s_load_dword s99, s[{ptr['V']}:{ptr['V']+1}], s99")
XS = vS
e(f"v_lshlrev_b32 v{vT+3}, 6, v{vLANE}")
for i in range(4):
    e.vmem(f"buffer_load_dwordx4 {vr(XS+4*i,4)}, v{vT+3}, {srd('x')}, 0 offen offset:{16*i}", "xs")
XF = vS + 16
e(f"s_lshl_b32 s{sT}, s{sGRP}, 7")
e(f"s_lshl_b32 s{sT+1}, s{sW}, 5")
e(f"s_add_u32 s{sT}, s{sT}, s{sT+1}")
e(f"s_lshl_b32 s{sT+2}, s{sT}, 1")
e(f"v_lshlrev_b32 v{vT+4}, 11, v{B_}")
e(f"v_lshl_add_u32 v{vT+4}, v{G_}, 3, v{vT+4}")
e.vmem(f"buffer_load_dwordx2 {vr(XF,2)}, v{vT+4}, {srd('x')}, s{sT+2} offen", "xf")
e.vmem(f"buffer_load_dwordx2 {vr(XF+2,2)}, v{vT+4}, {srd('x')}, s{sT+2} offen offset:32", "xf")
XF2 = vS + 20
if CFG["GS"]:
    e(f"s_lshl_b32 s{sT+3}, s{sGG}, 7"); e(f"s_add_u32 s{sT+3}, s{sT+3}, s{sT+1}")
    e(f"s_lshl_b32 s{sT+4}, s{sT+3}, 1")
    e.vmem(f"buffer_load_dwordx2 {vr(XF2,2)}, v{vT+4}, {srd('x')}, s{sT+4} offen", "xf")
    e.vmem(f"buffer_load_dwordx2 {vr(XF2+2,2)}, v{vT+4}, {srd('x')}, s{sT+4} offen offset:32", "xf")
e(f"s_lshl_b32 s{sRING}, s{sW}, 15")
e(f"s_lshl_b32 s{sT+1}, s{sJ}, 8")
e(f"s_lshl_b32 s{sWQ}, s{sT}, 13")
e(f"s_add_u32 s{sWQ}, s{sWQ}, s{sT+1}")
wvoff(vWQD, 8192)
if CFG["FINE"]: stamp()
issue_next()
if CFG["FINE"]: stamp()
mk_srd("wg", "wu")
e(f"s_mul_i32 s{sWG}, s{sT+3 if CFG['GS'] else sT}, 7168")
if CFG["GS"]:
    e(f"s_mov_b32 s{sJG}, s{sJU}")
else:
    e(f"s_add_u32 s{sJG}, s{sJ}, {CFG['JG']}"); e(f"s_and_b32 s{sJG}, s{sJG}, 31")
    e(f"s_add_u32 s{sJU}, s{sJ}, {CFG['JU']}"); e(f"s_and_b32 s{sJU}, s{sJU}, 31")
e(f"s_lshl_b32 s{sT+1}, s{sJU}, 8"); e(f"s_add_u32 s{sWU}, s{sWG}, s{sT+1}")
e(f"s_lshl_b32 s{sT+1}, s{sJG}, 8"); e(f"s_add_u32 s{sWG}, s{sWG}, s{sT+1}")
e(f"s_cmp_ge_u32 s{sJG}, 28")
e(f"s_cselect_b32 s{sWG}, 0, s{sWG}")
e(f"s_cselect_b32 s{SRD['wg']+2}, 0, s{SRD['wg']+2}")
e(f"s_cmp_ge_u32 s{sJU}, 28")
e(f"s_cselect_b32 s{sWU}, 0, s{sWU}")
e(f"s_cselect_b32 s{SRD['wu']+2}, 0, s{SRD['wu']+2}")
wvoff(vWGD, 7168)
if CFG["PQ"] != 4:
    for i in range(CFG["PQ"]): issue_unit(issued[0], i > 0); issued[0] += 1
else:
    for i in range(min(CFG["PRE"], 3) - 1): issue_next()
if CFG["FINE"]: stamp()
if CFG["PF"]:
    e(f"s_getpc_b64 s[{sT+4}:{sT+5}]")
    e("PCREF:")
    e(f"v_lshlrev_b32 v{vT+6}, 7, v0")
    e(f"v_min_u32 v{vT+6}, CODE_END-PCREF-4, v{vT+6}")
    e(f"v_mov_b32 v{vT+7}, s{sT+5}")
    e(f"v_add_co_u32 v{vT+6}, vcc, s{sT+4}, v{vT+6}")
    e(f"v_addc_co_u32 v{vT+7}, vcc, 0, v{vT+7}, vcc")
    e.vmem(f"global_load_dword v254, v[{vT+6}:{vT+7}], off", "pf")
mk_srd("ws", "K", "V", "wo", "wd", "out")
e(f"s_lshl_b32 s{sKV}, s{sGRP}, 23")
e(f"s_lshl_b32 s{sT}, s{sHI}, 18")
e(f"s_add_u32 s{sKV}, s{sKV}, s{sT}")
e(f"s_lshl_b32 s{sT}, s{sW}, 13")
e(f"s_add_u32 s{sKV}, s{sKV}, s{sT}")
e(f"s_lshl_b32 s{sWO}, s{sR5}, 16")
e(f"s_lshl_b32 s{sT}, s{sHALF}, 10")
e(f"s_add_u32 s{sWO}, s{sWO}, s{sT}")
e(f"s_lshl_b32 s{sT}, s{sW}, 8")
e(f"s_add_u32 s{sWO}, s{sWO}, s{sT}")
e(f"s_cmp_ge_u32 s{sR5}, 112")
e(f"s_cselect_b32 s{SRD['wd']+2}, 0, s{SRD['wd']+2}")
if CFG["TLB"]:
    e(f"v_mov_b32 v{t}, 0")
    if CFG["TLB"] & 1:
        e.vmem(f"buffer_load_dword v254, v{t}, {srd('K')}, s{sKV} offen nt", "pf")
        e.vmem(f"buffer_load_dword v254, v{t}, {srd('V')}, s{sKV} offen nt", "pf")
    if CFG["TLB"] & 2:
        e.vmem(f"buffer_load_dword v254, v{t}, {srd('wo')}, s{sWO} offen nt", "pf")
        e.vmem(f"buffer_load_dword v254, v{t}, {srd('wd')}, s{sWO} offen nt", "pf")
    if CFG["TLB"] & 4:
        e(f"v_min_u32 v{t+1}, 4, v{vLANE}")
        e(f"v_lshlrev_b32 v{t+1}, 21, v{t+1}")
        e(f"s_lshl_b32 s{sT}, s2, 2"); e(f"s_add_u32 s{sT}, s{sT}, s{sW}"); e(f"s_lshl_b32 s{sT}, s{sT}, 8")
        e.vmem(f"buffer_load_dword v254, v{t+1}, {srd('ws')}, s{sT} offen sc1", "pf")
for j in range(4):
    e(f"v_add_u32 v{t}, {4*j}, v{G_}")
    e(f"v_xor_b32 v{t}, v{t}, v{N_}")
    e(f"v_lshlrev_b32 v{t}, 4, v{t}")
    e(f"v_lshl_add_u32 v{vKD+j}, v{G_}, 8, v{t}")
for par in range(2):
    e(f"v_add_u32 v{t}, {4*par}, v{G_}")
    e(f"v_lshlrev_b32 v{t}, 1, v{t}")
    e(f"v_xor_b32 v{t}, v{t}, v{N_}")
    e(f"v_lshlrev_b32 v{t}, 4, v{t}")
    e(f"v_lshl_add_u32 v{vVD+par}, v{G_}, 8, v{t}")
for i in range(CFG["PRE"] - 3): issue_next()
wvoff(vWOD, 2048)
e(f"v_lshlrev_b32 v{t+1}, 8, v{N_}")
e(f"v_add_u32 v{t+1}, s{sRING}, v{t+1}")
for s in range(4):
    e(f"v_add_u32 v{t}, {4*s}, v{G_}")
    e(f"v_xor_b32 v{t}, v{t}, v{N_}")
    e(f"v_lshl_add_u32 v{vKR+s}, v{t}, 4, v{t+1}")
e(f"v_lshrrev_b32 v{t}, 2, v{vLANE}")
e(f"v_and_b32 v{t+1}, 7, v{t}")
e(f"v_lshlrev_b32 v{t}, 8, v{t}")
e(f"v_add_u32 v{t}, s{sRING}, v{t}")
e(f"v_and_b32 v{t+2}, 3, v{vLANE}")
e(f"v_lshlrev_b32 v{t+2}, 3, v{t+2}")
e(f"v_add_u32 v{t}, v{t}, v{t+2}")
for db in range(8):
    e(f"v_xor_b32 v{t+2}, {db}, v{t+1}")
    e(f"v_lshl_add_u32 v{vTR+db}, v{t+2}, 5, v{t}")
stamp()
e("s_waitcnt lgkmcnt(0)")
e(f"s_lshl_b32 s{sT}, s{sJ}, 14"); e(f"s_lshl_b32 s{sT+1}, s{sGRP}, 10")
e(f"s_add_u32 s{sT}, s{sT}, s{sT+1}"); e(f"s_add_u32 s{sQP}, s{sT}, {WS_QP}")
e(f"s_lshr_b32 s{sT}, s{sGRP}, 2"); e(f"s_and_b32 s{sT+1}, s{sGRP}, 3")
if CFG["QFLIP"]: e(f"s_xor_b32 s{sT}, s{sT}, 1")
e(f"s_lshl_b32 s{sT+2}, s{sT+1}, 2"); e(f"s_add_u32 s{sT+2}, s{sT+2}, s{sW}")
e(f"s_lshl_b32 s{sT+3}, s{sHI}, 14"); e(f"s_lshl_b32 s{sT+4}, s{sT}, 13")
e(f"s_add_u32 s{sT+3}, s{sT+3}, s{sT+4}"); e(f"s_lshl_b32 s{sT+4}, s{sT+2}, 6")
e(f"s_add_u32 s{sT+3}, s{sT+3}, s{sT+4}"); e(f"s_add_u32 s{sQPR}, s{sT+3}, {WS_QP}")
e(f"s_lshl_b32 s{sT+3}, s{sT}, 14"); e(f"s_lshl_b32 s{sT+4}, s{sHI}, 9")
e(f"s_add_u32 s{sT+3}, s{sT+3}, s{sT+4}"); e(f"s_lshl_b32 s{sT+4}, s{sT+2}, 5")
e(f"s_add_u32 s{sT+3}, s{sT+3}, s{sT+4}"); e(f"s_add_u32 s{sQF}, s{sT+3}, {WS_QF}")
e(f"s_lshl_b32 s{sT+3}, s{sGRP}, 12"); e(f"s_add_u32 s{sQFR}, s{sT+3}, {WS_QF}")
e(f"s_cmp_ge_u32 s{sW}, 2"); e(f"s_cselect_b32 s{sT+3}, s{sJU}, s{sJG}")
e(f"s_lshl_b32 s{sT+3}, s{sT+3}, 15"); e(f"s_lshl_b32 s{sT+4}, s{sGG if CFG['GS'] else sGRP}, 9"); e(f"s_add_u32 s{sT+3}, s{sT+3}, s{sT+4}")
e(f"s_lshr_b32 s{sT+4}, s{sW}, 1"); e(f"s_lshl_b32 s{sT+4}, s{sT+4}, 12"); e(f"s_add_u32 s{sT+3}, s{sT+3}, s{sT+4}")
e(f"s_and_b32 s{sT+4}, s{sW}, 1"); e(f"s_lshl_b32 s{sT+4}, s{sT+4}, 8"); e(f"s_add_u32 s{sT+3}, s{sT+3}, s{sT+4}")
e(f"s_add_u32 s{sGUP}, s{sT+3}, {WS_GU}")
e(f"s_lshl_b32 s{sT+3}, s{sR5}, 13"); e(f"s_add_u32 s{sGUC}, s{sT+3}, {WS_GU}")
e(f"s_lshl_b32 s{sT+3}, s2, 0");
e(f"s_lshl_b32 s{sT+3}, s{sGRP}, 5"); e(f"s_add_u32 s{sT+3}, s{sT+3}, s{sHI}"); e(f"s_lshl_b32 s{sT+3}, s{sT+3}, 12")
e(f"s_add_u32 s{sOP}, s{sT+3}, {WS_O}")
e(f"s_lshl_b32 s{sT+3}, s{sGRP}, 12"); e(f"s_lshl_b32 s{sT+4}, s{sHI}, 4"); e(f"s_add_u32 s{sT+3}, s{sT+3}, s{sT+4}")
e(f"s_add_u32 s{sMLP}, s{sT+3}, {WS_ML}")
e(f"s_mov_b32 s{sSCALE}, 0x3db504f3"); e(f"s_mov_b32 s{sSCALE+1}, 0x3db504f3")
e(f"s_mov_b32 s{sL2E}, 0x3fb8aa3b"); e(f"s_mov_b32 s{sL2E+1}, 0x3fb8aa3b")
e(f"s_mov_b32 s{sMASK}, 0xffff0000")
for i in range(4): e(f"s_mov_b32 s{sSEL+i}, {hex(0x07060500 + i)}")
e(f"s_mov_b32 s{sCK}, 0x0c0c0400"); e(f"s_mov_b32 s{sCK+1}, 0x04000c0c"); e(f"s_mov_b32 s{sM24}, 0xffffff00")

e("s_waitcnt lgkmcnt(0)")
e(f"s_mul_i32 s{sTAG}, s{sTAG}, 1664525")
e(f"s_add_u32 s{sTAG}, s{sTAG}, 1013904223")
e(f"v_mov_b32 v{vTAG}, s{sTAG}")
stamp()
e.wait_vm("xs")
if CFG["E0"] == 2: top_up(0)
stamp()
X = vS + 24
for i in range(16):
    unpack(XS + i, X + 2*i, X + 2*i + 1)
acc = vT + 4
e(f"v_pk_add_f32 {vr(acc,2)}, {vr(X,2)}, {vr(X+2,2)}")
for i in range(2, 16):
    e(f"v_pk_add_f32 {vr(acc,2)}, {vr(acc,2)}, {vr(X+2*i,2)}")
e(f"v_add_f32 v{acc}, v{acc}, v{acc+1}")
row_sum(acc, (8, 4, 2, 1))
swap_red(acc, acc+1, 16)
e(f"v_mul_f32 v{acc}, 0x3a800000, v{acc}")
e(f"v_mov_b32 v{acc+1}, v{acc}")
va = acc + 2
for i in range(16):
    e(f"v_pk_add_f32 {vr(X+2*i,2)}, {vr(X+2*i,2)}, {vr(acc,2)} neg_lo:[0,1] neg_hi:[0,1]")
e(f"v_pk_mul_f32 {vr(va,2)}, {vr(X,2)}, {vr(X,2)}")
for i in range(1, 16):
    e(f"v_pk_fma_f32 {vr(va,2)}, {vr(X+2*i,2)}, {vr(X+2*i,2)}, {vr(va,2)}")
e(f"v_add_f32 v{va}, v{va}, v{va+1}")
row_sum(va, (8, 4, 2, 1))
swap_red(va, va+1, 16)
e(f"v_mul_f32 v{va}, 0x3a800000, v{va}")
bf16_round_pair(acc, acc, va)
unpack(acc, acc+1, va)
e(f"v_add_f32 v{va}, 0x3727c5ac, v{va}")
bf16_round_pair(va, va, va)
e(f"v_and_b32 v{va}, s{sMASK}, v{va}")
e(f"v_sqrt_f32 v{va}, v{va}")
bf16_round_pair(va, va, va)
e(f"v_and_b32 v{va}, s{sMASK}, v{va}")
e(f"v_readlane_b32 s{sT}, v{acc+1}, 0")
e(f"v_readlane_b32 s{sT+1}, v{acc+1}, 32")
e(f"v_readlane_b32 s{sT+2}, v{va}, 0")
e(f"v_readlane_b32 s{sT+3}, v{va}, 32")
e(f"v_cmp_eq_u32 vcc, 1, v{B_}")
e(f"v_mov_b32 v{acc}, s{sT}"); e(f"v_mov_b32 v{acc+1}, s{sT+1}")
e(f"v_cndmask_b32 v{acc}, v{acc}, v{acc+1}, vcc")
e(f"v_mov_b32 v{va}, s{sT+2}"); e(f"v_mov_b32 v{va+1}, s{sT+3}")
e(f"v_cndmask_b32 v{va}, v{va}, v{va+1}, vcc")
e(f"v_rcp_f32 v{va+1}, v{va}")
e.wait_vm("xf")
Y = X
def norm_frag(XF, dst):
    for i in range(4):
        unpack(XF + i, Y + 2*i, Y + 2*i + 1)
    for i in range(8):
        e(f"v_sub_f32 v{Y+i}, v{Y+i}, v{acc}")
    for i in range(4):
        bf16_round_pair(XF + i, Y + 2*i, Y + 2*i + 1)
        unpack(XF + i, Y + 2*i, Y + 2*i + 1)
    for i in range(8):
        e(f"v_mul_f32 v{Y+8+i}, v{Y+i}, v{va+1}")
        e(f"v_fma_f32 v{Y+i}, -v{Y+8+i}, v{va}, v{Y+i}")
        e(f"v_fma_f32 v{Y+i}, v{Y+i}, v{va+1}, v{Y+8+i}")
    for i in range(4):
        bf16_round_pair(dst + i, Y + 2*i, Y + 2*i + 1)
norm_frag(XF, vXN)
vXG = vXN
if CFG["GS"]:
    vXG = vH
    norm_frag(XF2, vXG)
aRW, aT8, aLN16, aT16, aN272 = vA, vA+1, vA+2, vA+3, vA+4
e(f"s_lshl_b32 s{sT}, s{sW}, 10"); e(f"s_add_u32 s{sT}, s{sT}, {L_R}")
e(f"v_lshlrev_b32 v{aRW}, 9, v{B_}"); e(f"v_lshl_add_u32 v{aRW}, v{G_}, 4, v{aRW}"); e(f"v_add_u32 v{aRW}, s{sT}, v{aRW}")
e(f"v_lshlrev_b32 v{aT16}, 4, v0")
e(f"v_mul_u32_u24 v{aN272}, 272, v{N_}"); e(f"v_lshl_add_u32 v{aN272}, v{G_}, 4, v{aN272}")
stamp()

def proj_tile(idx, mat):
    wait_tile(idx)
    if idx == 0 and CFG["E0"] == 1: top_up(0)
    if idx == 0: stamp()
    read_wfrags(idx, vFR)
    e("s_waitcnt lgkmcnt(0)")
    return
def proj_mfma(mat, bfrag):
    for db in range(8):
        e(f"v_mfma_f32_16x16x32_bf16 {vr(vACC+4*db,4)}, {vr(vFR+4*db,4)}, {vr(bfrag,4)}, 0")
def proj_write(mat):
    e(f"s_mov_b64 s[{sEX}:{sEX+1}], exec")
    e("s_mov_b32 exec_lo, 0x00030003"); e("s_mov_b32 exec_hi, 0x00030003")
    for db in range(8):
        e(f"ds_write_b128 v{aRW}, {vr(vACC+4*db,4)} offset:{mat*4096 + db*64}")
    e(f"s_mov_b64 exec, s[{sEX}:{sEX+1}]")

proj_tile(0, 0)
proj_mfma(0, vXN)
proj_write(0)
e("s_waitcnt lgkmcnt(0)")
e("s_barrier")
g0 = vT + 8
e(f"v_lshlrev_b32 v{g0+7}, 2, v0")
for w in range(4):
    e(f"ds_read_b32 v{g0+w}, v{g0+7} offset:{L_R - MISC + w*1024 + 0}" if False else f"ds_read_b32 v{g0+w}, v{aT8} offset:{w*1024}") if False else None
e(f"v_add_u32 v{g0+7}, {L_R}, v{g0+7}")
for w in range(4):
    e(f"ds_read_b32 v{g0+w}, v{g0+7} offset:{w*1024}")
e(f"v_and_b32 v{g0+6}, 127, v0"); e(f"v_lshlrev_b32 v{g0+6}, 3, v{g0+6}")
e(f"v_lshrrev_b32 v{g0+5}, 7, v0"); e(f"v_lshl_add_u32 v{g0+6}, v{g0+5}, 13, v{g0+6}")
e("s_waitcnt lgkmcnt(0)")
e(f"v_add_f32 v{g0}, v{g0}, v{g0+1}"); e(f"v_add_f32 v{g0+2}, v{g0+2}, v{g0+3}")
e(f"v_add_f32 v{g0}, v{g0}, v{g0+2}"); e(f"v_mov_b32 v{g0+1}, v{vTAG}")
e.vmem(f"buffer_store_dwordx2 {vr(g0,2)}, v{g0+6}, {srd('ws')}, s{sQP} offen{ST}", "st")
stamp()
top_up(0)
proj_tile(1, 1)
top_up(1)
proj_mfma(1, vXG)
proj_write(1)
proj_tile(2, 2)
QR = vS
aQR = vA + 5
e(f"v_and_b32 v{aQR}, 31, v{vLANE}")
e(f"v_lshrrev_b32 v{g0}, 2, v{aQR}"); e(f"v_and_b32 v{aQR}, 3, v{aQR}")
e(f"v_lshlrev_b32 v{aQR}, 4, v{aQR}"); e(f"v_lshl_add_u32 v{aQR}, v{g0}, 10, v{aQR}")
qr_loads = [f"buffer_load_dwordx4 {vr(QR,4)}, v{aQR}, {srd('ws')}, s{sQPR} offen{LD}"]
gather(qr_loads, "qr")
top_up(2)
proj_mfma(2, vXG)
proj_write(2)
e("s_waitcnt lgkmcnt(0)")
e("s_barrier")
e(f"s_lshr_b32 s{sT}, s{sW}, 1"); e(f"s_lshl_b32 s{sT}, s{sT}, 12"); e(f"s_and_b32 s{sT+1}, s{sW}, 1")
e(f"s_lshl_b32 s{sT+1}, s{sT+1}, 9"); e(f"s_add_u32 s{sT}, s{sT}, s{sT+1}"); e(f"s_add_u32 s{sT}, s{sT}, {L_R + 4096}")
e(f"v_lshlrev_b32 v{g0+12}, 3, v{vLANE}"); e(f"v_add_u32 v{g0+12}, s{sT}, v{g0+12}")
for w in range(4):
    e(f"ds_read_b64 {vr(g0+2*w,2)}, v{g0+12} offset:{w*1024}")
e(f"v_lshlrev_b32 v{g0+13}, 4, v{N_}"); e(f"v_lshl_add_u32 v{g0+13}, v{G_}, 13, v{g0+13}")
e("s_waitcnt lgkmcnt(0)")
e(f"v_pk_add_f32 {vr(g0,2)}, {vr(g0,2)}, {vr(g0+2,2)}"); e(f"v_pk_add_f32 {vr(g0+4,2)}, {vr(g0+4,2)}, {vr(g0+6,2)}")
e(f"v_pk_add_f32 {vr(g0,2)}, {vr(g0,2)}, {vr(g0+4,2)}")
e(f"v_mov_b32 v{g0+2}, v{g0+1}"); e(f"v_mov_b32 v{g0+1}, v{vTAG}"); e(f"v_mov_b32 v{g0+3}, v{vTAG}")
e.vmem(f"buffer_store_dwordx4 {vr(g0,4)}, v{g0+13}, {srd('ws')}, s{sGUP} offen{ST}", "st")
stamp()

HG = vFR
def compute_h():
    e(f"v_add_u32 v{g0+1}, {L_H}, v{aN272}")
    for m in range(2):
        for u in range(2):
            e(f"ds_read_b128 {vr(HG + 8*m + 4*u, 4)}, v{g0+1} offset:{m*128 + u*64}")
    e("s_waitcnt lgkmcnt(0)")
    for i in range(16):
        row_sum(HG + i, (2, 4, 8))
    for i in range(8):
        bf16_round_pair(g0 + i, HG + 2*i, HG + 2*i + 1)
        unpack(g0 + i, HG + 2*i, HG + 2*i + 1)
    e(f"s_mov_b32 s{sT}, 0xbfb8aa3b")
    for i in range(8):
        e(f"v_mul_f32 v{g0+i}, s{sT}, v{HG+i}")
    for i in range(8):
        e(f"v_exp_f32 v{g0+i}, v{g0+i}")
    for i in range(8):
        e(f"v_add_f32 v{g0+i}, 1.0, v{g0+i}")
    for i in range(8):
        e(f"v_rcp_f32 v{g0+i}, v{g0+i}")
    for i in range(8):
        e(f"v_mul_f32 v{HG+i}, v{HG+i}, v{g0+i}")
    for i in range(4):
        bf16_round_pair(g0 + i, HG + 2*i, HG + 2*i + 1)
        unpack(g0 + i, HG + 2*i, HG + 2*i + 1)
    for i in range(8):
        e(f"v_mul_f32 v{HG+i}, v{HG+i}, v{HG+8+i}")
    for i in range(4):
        bf16_round_pair(vH + i, HG + 2*i, HG + 2*i + 1)

def k_tile(idx):
    n = idx - 3; slot = idx % 4
    wait_tile(idx)
    for u in range(2):
        for s in range(4):
            e(f"ds_read_b128 {ar(n*32 + u*16 + s*4, 4)}, v{vKR+s} offset:{slot*8192 + u*4096}")
    e("s_waitcnt lgkmcnt(0)")
GU = vS + 8
QG = vS + 16
gu_loads = [f"buffer_load_dwordx4 {vr(GU+4*m,4)}, v{aT16}, {srd('ws')}, s{sGUC} offen offset:{0}" .replace("offset:0", "") + (f" offset:{4095}" if False else "") for m in range(1)]
sGUC2 = 83
e(f"s_add_u32 s{sGUC2}, s{sGUC}, 4096")
gu_loads = [f"buffer_load_dwordx4 {vr(GU,4)}, v{aT16}, {srd('ws')}, s{sGUC} offen{LD}",
            f"buffer_load_dwordx4 {vr(GU+4,4)}, v{aT16}, {srd('ws')}, s{sGUC2} offen{LD}"]
qg_loads = [f"buffer_load_dwordx4 {vr(QG,4)}, v{aT16}, {srd('ws')}, s{sQFR} offen{LD}"]
HS = CFG["HS"]; vQH = vS + 32
def half_exec(h):
    if h == 0: e("s_mov_b32 exec_lo, 0x00ff00ff"); e("s_mov_b32 exec_hi, 0x00ff00ff")
    elif h == 1: e("s_not_b64 exec, exec")
    else: e("s_mov_b64 exec, -1")
for idx in range(3, 11):
    if idx == 10 and HS:
        for i in range(16): e(f"v_mov_b32 v{vQ+i}, 0"); e(f"v_mov_b32 v{vQH+i}, 0")
        for i in range(32): e(f"v_mov_b32 v{vP+i}, 0")
    k_tile(idx)
    if idx == CFG["H3_AT"]: gather(gu_loads, "gu")
    if idx == CFG["QG_AT"]: gather(qg_loads, "qg")
    if idx != CFG["QR_CHK"]: top_up(idx)
    if idx == CFG["QR_CHK"]:
        e.wait_vm("qr")
        check_tags([QR+1, QR+3], qr_loads, g0, g0+1)
        for r in (QR, QR+2):
            row_sum(r, (4, 8))
            swap_red(r, g0, 16)
        e(f"v_cvt_pk_bf16_f32 v{g0}, v{QR}, v{QR+2}")
        e(f"v_mov_b32 v{g0+1}, v{vTAG}")
        e(f"v_lshlrev_b32 v{g0+2}, 3, v{vLANE}"); e(f"v_mov_b32 v{g0+3}, {OOB}")
        e(f"v_cmp_gt_u32 vcc, 4, v{vLANE}")
        e(f"v_cndmask_b32 v{g0+2}, v{g0+3}, v{g0+2}, vcc")
        e.vmem(f"buffer_store_dwordx2 {vr(g0,2)}, v{g0+2}, {srd('ws')}, s{sQF} offen{ST}", "st")
        stamp()
        top_up(idx)
stamp()
if CFG["SPR"] == 3: top_up(10, 3)
e.wait_vm("gu", "qg")
check_tags([GU+1, GU+3, GU+5, GU+7, QG+1, QG+3], gu_loads + qg_loads, g0, g0+1)
e(f"v_lshrrev_b32 v{g0}, 5, v0"); e(f"v_mul_u32_u24 v{g0}, 272, v{g0}"); e(f"v_and_b32 v{g0+1}, 31, v0")
e(f"v_lshl_add_u32 v{g0}, v{g0+1}, 3, v{g0}"); e(f"v_add_u32 v{g0}, {L_Q}, v{g0}")
e(f"v_mov_b32 v{QG+1}, v{QG+2}")
e(f"ds_write_b64 v{g0}, {vr(QG,2)}")
e(f"v_lshrrev_b32 v{g0+2}, 4, v0"); e(f"v_mul_u32_u24 v{g0+2}, 272, v{g0+2}")
e(f"v_lshl_add_u32 v{g0+2}, v{N_}, 3, v{g0+2}"); e(f"v_add_u32 v{g0+2}, {L_H}, v{g0+2}")
for m in range(2):
    e(f"v_mov_b32 v{GU+4*m+1}, v{GU+4*m+2}")
    e(f"ds_write_b64 v{g0+2}, {vr(GU+4*m,2)} offset:{128*m}")
e("s_waitcnt lgkmcnt(0)")
e("s_barrier")
e(f"v_and_b32 v{g0}, 7, v{N_}"); e(f"v_mul_u32_u24 v{g0}, 272, v{g0}"); e(f"v_lshl_add_u32 v{g0}, v{G_}, 4, v{g0}")
e(f"v_add_u32 v{g0}, {L_Q}, v{g0}")
if HS:
    for h in range(2):
        half_exec(h)
        for s in range(4):
            e(f"ds_read_b128 {vr((vQH if h else vQ)+4*s,4)}, v{g0} offset:{s*64}")
    half_exec(2)
else:
    for s in range(4):
        e(f"ds_read_b128 {vr(vQ+4*s,4)}, v{g0} offset:{s*64}")
e("s_waitcnt lgkmcnt(0)")
if CFG["SPR"] == 2: top_up(10, 3)
for s in range(4):
    for T in range(8):
        for u in range(2):
            if HS:
                d = vr(vS + (T & 3)*8 + u*4, 4)
                e(f"v_mfma_f32_16x16x32_bf16 {d}, {ar(T*32 + u*16 + s*4, 4)}, {vr((vQH if T >= 4 else vQ)+4*s,4)}, {'0' if s == 0 and T < 4 else d}")
            else:
                d = vr(vS + T*8 + u*4, 4)
                e(f"v_mfma_f32_16x16x32_bf16 {d}, {ar(T*32 + u*16 + s*4, 4)}, {vr(vQ+4*s,4)}, {'0' if s == 0 else d}")
stamp()
if CFG["SPR"]: top_up(10, q4=CFG["SP3"] if CFG["SPR"] == 1 else 16)
tp = vFR
NP = 16 if HS else 32
CH = NP // 2
for i in range(NP):
    bf16_round_pair(tp + i, vS + 2*i, vS + 2*i + 1)
for i in range(NP):
    unpack(tp + i, vS + 2*i, vS + 2*i + 1)
for i in range(NP):
    e(f"v_pk_mul_f32 {vr(vS+2*i,2)}, {vr(vS+2*i,2)}, s[{sSCALE}:{sSCALE+1}]")
for i in range(NP):
    bf16_round_pair(tp + i, vS + 2*i, vS + 2*i + 1)
for i in range(NP):
    unpack(tp + i, vS + 2*i, vS + 2*i + 1)
vM, vL = vA + 6, vA + 7
for c in range(4):
    e(f"v_max3_f32 v{g0+c}, v{vS+CH*c}, v{vS+CH*c+1}, v{vS+CH*c+2}")
for i in range((CH - 4) // 2):
    for c in range(4):
        e(f"v_max3_f32 v{g0+c}, v{g0+c}, v{vS+CH*c+3+2*i}, v{vS+CH*c+4+2*i}")
for c in range(4):
    e(f"v_max_f32 v{g0+c}, v{g0+c}, v{vS+CH*c+CH-1}")
e(f"v_max3_f32 v{g0}, v{g0}, v{g0+1}, v{g0+2}"); e(f"v_max_f32 v{vM}, v{g0}, v{g0+3}")
if CFG["SPR"]: top_up(10, q4=CFG["SP4"])
swap_red(vM, g0, 32, "max_f32"); swap_red(vM, g0, 16, "max_f32")
if HS: row_sum(vM, (8,), "max_f32")
e(f"v_mul_f32 v{vM}, s{sL2E}, v{vM}")
e(f"v_sub_f32 v{g0}, 0, v{vM}"); e(f"v_mov_b32 v{g0+1}, v{g0}")
for i in range(NP):
    e(f"v_pk_fma_f32 {vr(vS+2*i,2)}, {vr(vS+2*i,2)}, s[{sL2E}:{sL2E+1}], {vr(g0,2)}")
for i in range(2*NP):
    e(f"v_exp_f32 v{vS+i}, v{vS+i}")
if HS:
    for h in range(2):
        half_exec(h)
        for i in range(NP):
            bf16_round_pair(vP + 16*h + i, vS + 2*i, vS + 2*i + 1)
    half_exec(2)
else:
    for i in range(32):
        bf16_round_pair(vP + i, vS + 2*i, vS + 2*i + 1)
for c in range(4):
    e(f"v_pk_add_f32 {vr(g0+2*c,2)}, {vr(vS+CH*c,2)}, {vr(vS+CH*c+2,2)}")
for i in range(2, CH // 2):
    for c in range(4):
        e(f"v_pk_add_f32 {vr(g0+2*c,2)}, {vr(g0+2*c,2)}, {vr(vS+CH*c+2*i,2)}")
e(f"v_pk_add_f32 {vr(g0,2)}, {vr(g0,2)}, {vr(g0+2,2)}"); e(f"v_pk_add_f32 {vr(g0+4,2)}, {vr(g0+4,2)}, {vr(g0+6,2)}")
e(f"v_pk_add_f32 {vr(g0,2)}, {vr(g0,2)}, {vr(g0+4,2)}"); e(f"v_add_f32 v{vL}, v{g0}, v{g0+1}")
swap_red(vL, g0, 32); swap_red(vL, g0, 16)
if HS: row_sum(vL, (8,))
stamp()
hd = g0 + 2
SUB = g0 + 10
aOG, aML1, aML2 = g0 + 11, g0 + 12, g0 + 13
aF = vA + 5
aFG = g0 + 10
def addr_merge1():
    e(f"v_and_b32 v{g0}, 7, v{N_}"); e(f"v_mul_u32_u24 v{g0}, 528, v{g0}"); e(f"v_lshl_add_u32 v{g0}, v{G_}, 4, v{g0}")
    e(f"v_add_u32 v{g0}, s{sRING}, v{g0}")
    e(f"s_lshl_b32 s{sT}, s{sW}, 6"); e(f"s_add_u32 s{sT}, s{sT}, {L_ML}")
    e(f"v_lshlrev_b32 v{g0+1}, 3, v{N_}"); e(f"v_add_u32 v{g0+1}, s{sT}, v{g0+1}")
def addr_merge2():
    e(f"v_lshrrev_b32 v{hd}, 5, v{vLANE}"); e(f"s_lshl_b32 s{sT}, s{sW}, 1"); e(f"v_add_u32 v{hd}, s{sT}, v{hd}")
    e(f"v_and_b32 v{g0+5}, 31, v{vLANE}"); e(f"v_lshlrev_b32 v{g0+5}, 4, v{g0+5}")
    e(f"v_mul_u32_u24 v{g0+4}, 528, v{hd}"); e(f"v_add_u32 v{g0+3}, v{g0+5}, v{g0+4}")
    e(f"v_lshlrev_b32 v{g0+4}, 3, v{hd}"); e(f"v_add_u32 v{g0+4}, {L_ML}, v{g0+4}")
    e(f"v_lshl_add_u32 v{g0+5}, v{hd}, 9, v{g0+5}")
    e(f"v_lshlrev_b32 v{g0+6}, 9, v{hd}"); e(f"v_mov_b32 v{g0+7}, {OOB}")
    e(f"v_and_b32 v{g0+8}, 31, v{vLANE}"); e(f"v_cmp_eq_u32 vcc, 0, v{g0+8}")
    e(f"v_cndmask_b32 v{g0+6}, v{g0+7}, v{g0+6}, vcc")
    e(f"v_add_u32 v{g0+7}, 0x8000, v{g0+3}"); e(f"v_add_u32 v{g0+8}, 0x10000, v{g0+3}"); e(f"v_add_u32 v{g0+9}, 0x18000, v{g0+3}")
def addr_gather():
    e(f"v_lshrrev_b32 v{SUB}, 1, v{N_}")
    e(f"s_lshr_b32 s{sT}, s{sR5}, 5")
    e(f"s_lshr_b32 s{sT+1}, s{sR5}, 2"); e(f"s_and_b32 s{sT+1}, s{sT+1}, 7")
    e(f"s_and_b32 s{sT+2}, s{sR5}, 3")
    e(f"s_lshl_b32 s{sT+3}, s{sT}, 17"); e(f"s_lshl_b32 s{sT+4}, s{sW}, 15"); e(f"s_add_u32 s{sT+3}, s{sT+3}, s{sT+4}")
    e(f"s_lshl_b32 s{sT+4}, s{sT+1}, 9"); e(f"s_add_u32 s{sT+3}, s{sT+3}, s{sT+4}")
    e(f"s_lshl_b32 s{sT+4}, s{sT+2}, 7"); e(f"s_add_u32 s{sT+3}, s{sT+3}, s{sT+4}"); e(f"s_add_u32 s{sOC}, s{sT+3}, {WS_O}")
    e(f"v_lshlrev_b32 v{aOG}, 19, v{B_}"); e(f"v_lshl_add_u32 v{aOG}, v{SUB}, 12, v{aOG}"); e(f"v_lshl_add_u32 v{aOG}, v{G_}, 4, v{aOG}")
    e(f"s_lshl_b32 s{sT+3}, s{sT}, 12"); e(f"s_lshl_b32 s{sT+4}, s{sT+1}, 9"); e(f"s_add_u32 s{sT+3}, s{sT+3}, s{sT+4}")
    e(f"s_add_u32 s{sT+5}, s{sT+3}, {WS_ML}")
    e(f"s_lshl_b32 s{sT+4}, s{sW}, 7"); e(f"s_add_u32 s{sT+6}, s{sT+5}, s{sT+4}")
    e(f"v_lshlrev_b32 v{aML2}, 14, v{B_}"); e(f"v_lshl_add_u32 v{aML2}, v{SUB}, 4, v{aML2}")
    e(f"v_lshl_add_u32 v{aML1}, v{G_}, 7, v{aML2}")
def addr_f():
    e(f"v_lshlrev_b32 v{aF}, 15, v{SUB}"); e(f"v_lshl_add_u32 v{aF}, v{B_}, 6, v{aF}"); e(f"v_lshl_add_u32 v{aF}, v{G_}, 4, v{aF}")
    e(f"s_lshl_b32 s{sFP}, s{sHALF}, 20"); e(f"s_lshl_b32 s{sFC}, s{sW}, 18"); e(f"s_add_u32 s{sFP}, s{sFP}, s{sFC}")
    e(f"s_lshl_b32 s{sFC}, s{sR5}, 8"); e(f"s_add_u32 s{sFP}, s{sFP}, s{sFC}"); e(f"s_add_u32 s{sFP}, s{sFP}, {WS_F}")
def addr_final():
    e(f"s_and_b32 s{sT}, s2, 1"); e(f"s_lshr_b32 s{sT+1}, s2, 2"); e(f"s_bfe_u32 s{sT+4}, s2, {(1 << 16) | 1}")
    e(f"s_lshl_b32 s{sT+2}, s{sT+1}, 15"); e(f"s_lshl_b32 s{sT+3}, s{sT}, 6"); e(f"s_add_u32 s{sT+2}, s{sT+2}, s{sT+3}")
    e(f"s_lshl_b32 s{sT+3}, s{sT+4}, 5"); e(f"s_add_u32 s{sT+2}, s{sT+2}, s{sT+3}"); e(f"s_add_u32 s{sT+2}, s{sT+2}, {WS_F}")
    e(f"v_lshrrev_b32 v{aFG}, 1, v0"); e(f"v_lshlrev_b32 v{aFG}, 8, v{aFG}")
    e(f"v_and_b32 v{g0+9}, 1, v0"); e(f"v_lshl_add_u32 v{aFG}, v{g0+9}, 4, v{aFG}")
for idx in range(11, 19):
    T = idx - 11; ab = (T & 1) * 32
    if idx == 18 and CFG["HO"]:
        addr_gather(); addr_f(); addr_merge1(); addr_merge2()
    wait_tile(idx)
    read_wfrags(idx, ab, agpr=True)
    e("s_waitcnt lgkmcnt(0)")
    if idx == 18 and CFG["LATE"] in (4, 6, 7): LIM[0] = 19
    top_up(idx, CFG["VA"] or None)
    for db in range(8):
        d = vr(vACC + 4*db, 4)
        e(f"v_mfma_f32_16x16x32_bf16 {d}, {ar(ab + 4*db, 4)}, {vr(vP + 4*T, 4)}, {'0' if T == 0 else d}")
    if T == CFG["H_AT"]: compute_h()
stamp()
if HS:
    for i in range(32): row_sum(vACC + i, (8,))
OSLOT = (18 % 4) * 8192
if not CFG["HO"]: addr_merge1()
e(f"s_mov_b64 s[{sEX}:{sEX+1}], exec")
e("s_mov_b32 exec_lo, 0x00ff00ff"); e("s_mov_b32 exec_hi, 0x00ff00ff")
for db in range(8):
    e(f"ds_write_b128 v{g0}, {vr(vACC+4*db,4)} offset:{OSLOT + db*64}")
e("s_mov_b32 exec_lo, 0x000000ff"); e("s_mov_b32 exec_hi, 0")
e(f"ds_write_b64 v{g0+1}, {vr(vM,2)}")
e(f"s_mov_b64 exec, s[{sEX}:{sEX+1}]")
if not CFG["HO"]: addr_merge2()
e("s_waitcnt lgkmcnt(0)")
if CFG["FINE2"]: stamp()
e("s_barrier")
if CFG["FINE2"]: stamp()
MO = vS
for w in range(4):
    e(f"ds_read_b64 {vr(MO+16+2*w,2)}, v{g0+4} offset:{w*64}")
for w, a in enumerate((g0+3, g0+7, g0+8, g0+9)):
    e(f"ds_read_b128 {vr(MO+4*w,4)}, v{a} offset:{OSLOT}")
e("s_waitcnt lgkmcnt(4)")
mm = MO + 24
e(f"v_max3_f32 v{mm}, v{MO+16}, v{MO+18}, v{MO+20}"); e(f"v_max_f32 v{mm}, v{mm}, v{MO+22}")
for w in range(4):
    e(f"v_sub_f32 v{MO+16+2*w}, v{MO+16+2*w}, v{mm}")
for w in range(4):
    e(f"v_exp_f32 v{MO+16+2*w}, v{MO+16+2*w}")
e(f"v_mul_f32 v{mm+2}, v{MO+16}, v{MO+17}")
for w in range(1, 4):
    e(f"v_fma_f32 v{mm+2}, v{MO+16+2*w}, v{MO+17+2*w}, v{mm+2}")
e(f"v_mov_b32 v{mm+1}, v{vTAG}"); e(f"v_mov_b32 v{mm+3}, v{vTAG}")
e("s_waitcnt lgkmcnt(0)")
og = MO + 28
for k in range(4):
    e(f"v_mul_f32 v{og+k}, v{MO+16}, v{MO+k}")
for w in range(1, 4):
    for k in range(4):
        e(f"v_fma_f32 v{og+k}, v{MO+16+2*w}, v{MO+4*w+k}, v{og+k}")
embed(og, og)
e.vmem(f"buffer_store_dwordx4 {vr(og,4)}, v{g0+5}, {srd('ws')}, s{sOP} offen{ST}", "st")
e.vmem(f"buffer_store_dwordx4 {vr(mm,4)}, v{g0+6}, {srd('ws')}, s{sMLP} offen{ST}", "st")
if CFG["LATE"] in (1, 2, 4):
    LIM[0] = 20; top_up(18, 2)
if CFG["LATE"] == 7:
    LIM[0] = 20; top_up(18, q4=4 + CFG["WQ"])
stamp()
if not CFG["HO"]: addr_gather()
OG = vS + 40
o_loads = [f"buffer_load_dwordx4 {vr(OG+4*u,4)}, v{aOG}, {srd('ws')}, s{sOC} offen offset:{64*u}{LD}".replace(" offset:0", "") for u in range(2)]
o_loads += [f"buffer_load_dwordx4 {vr(OG+16,4)}, v{aML1}, {srd('ws')}, s{sT+5} offen{LD}",
            f"buffer_load_dwordx4 {vr(OG+20,4)}, v{aML2}, {srd('ws')}, s{sT+6} offen{LD}"]
if CFG["ACK"] & 2: e.wait_vm("st")
if not CFG["GL"]: gather(o_loads, "og", 2)
if CFG["LATE"] in (3, 6, 7):
    LIM[0] = 20; top_up(18, 2)
FA, FB = vFR + 8, vFR + 12
def select_F(F, vACC=vACC):
    e(f"s_mov_b64 s[{sEX}:{sEX+1}], exec")
    e("s_mov_b32 exec_lo, 0x00030003"); e("s_mov_b32 exec_hi, 0x00030003")
    for db in range(8):
        for r in range(4):
            e(f"v_mov_b32 v{F + r}, v{vACC + 4*db + r}")
        if db < 7: e("s_lshl_b64 exec, exec, 2")
    e(f"s_mov_b64 exec, s[{sEX}:{sEX+1}]")
    embed(F, F)
if not CFG["HO"]: addr_f()
if not CFG["ORD"]:
    wait_tile(19)
    read_wfrags(19, 64, agpr=True)
    e("s_waitcnt lgkmcnt(0)")
    for db in range(8):
        e(f"v_mfma_f32_16x16x32_bf16 {vr(vACC+4*db,4)}, {ar(64+4*db,4)}, {vr(vH,4)}, 0")
    if CFG["GL"] == 1: gather(o_loads, "og", 2)
    select_F(FB)
    wait_tile(20)
    if CFG["GL"] == 2: gather(o_loads, "og", 2)
    read_wfrags(20, 96, agpr=True)
stamp()
e.wait_vm("og")
if CFG["FINE2"]: stamp()
check_tags([OG+16+k for k in (1, 3, 5, 7)], o_loads, g0, g0+1, emb=(OG, OG+4), tmp=g0+2)
if CFG["FINE2"]: stamp()
gm = g0
e(f"v_mov_b32 v{gm}, v{OG+16}")
row_sum(gm, (2, 4, 8), "max_f32")
swap_red(gm, g0+1, 16, "max_f32"); swap_red(gm, g0+1, 32, "max_f32")
e(f"v_sub_f32 v{g0+2}, v{OG+16}, v{gm}"); e(f"v_sub_f32 v{g0+3}, v{OG+20}, v{gm}")
e(f"v_exp_f32 v{g0+2}, v{g0+2}"); e(f"v_exp_f32 v{g0+3}, v{g0+3}")
for i in range(8): e(f"v_and_b32 v{OG+i}, s{sM24}, v{OG+i}")
e(f"v_mul_f32 v{g0+2}, v{g0+2}, v{OG+18}")
OV = vS
for i in range(8):
    e(f"v_mul_f32 v{OV + i}, v{g0+3}, v{OG + i}")
for r in (2, 4, 8):
    for i in range(8):
        row_sum(OV + i, (r,))
    row_sum(g0+2, (r,))
e(f"s_lshl_b32 s{sT}, s{sW}, 8"); e(f"s_add_u32 s{sT}, s{sT}, {L_O2}")
e(f"v_lshlrev_b32 v{g0+5}, 7, v{B_}"); e(f"v_lshl_add_u32 v{g0+5}, v{G_}, 5, v{g0+5}")
e(f"v_add_u32 v{g0+6}, s{sT}, v{g0+5}"); e(f"v_add_u32 v{g0+5}, {L_O2}, v{g0+5}")
e(f"s_mov_b64 s[{sEX}:{sEX+1}], exec")
e("s_mov_b32 exec_lo, 0x00030003"); e("s_mov_b32 exec_hi, 0x00030003")
e(f"ds_write_b128 v{g0+6}, {vr(OV,4)}"); e(f"ds_write_b128 v{g0+6}, {vr(OV+4,4)} offset:16")
e(f"s_mov_b64 exec, s[{sEX}:{sEX+1}]")
swap_red(g0+2, g0+1, 16); swap_red(g0+2, g0+1, 32)
e(f"v_rcp_f32 v{g0+4}, v{g0+2}")
e(f"v_fma_f32 v{g0+7}, -v{g0+2}, v{g0+4}, 1.0"); e(f"v_fma_f32 v{g0+4}, v{g0+7}, v{g0+4}, v{g0+4}")
e("s_waitcnt lgkmcnt(0)")
if CFG["FINE2"]: stamp()
e("s_barrier")
if CFG["FINE2"]: stamp()
for w in range(4):
    for u in range(2):
        e(f"ds_read_b128 {vr(OV + 8 + 8*w + 4*u, 4)}, v{g0+5} offset:{w*256 + u*16}")
e("s_waitcnt lgkmcnt(0)")
for i in range(0, 8, 2):
    a = OV + 8 + i
    e(f"v_pk_add_f32 {vr(a,2)}, {vr(a,2)}, {vr(a+8,2)}"); e(f"v_pk_add_f32 {vr(a+16,2)}, {vr(a+16,2)}, {vr(a+24,2)}")
    e(f"v_pk_add_f32 {vr(a,2)}, {vr(a,2)}, {vr(a+16,2)}")
for i in range(8):
    e(f"v_mul_f32 v{OV+8+i}, v{OV+8+i}, v{g0+4}")
for i in range(4):
    bf16_round_pair(vO + i, OV + 8 + 2*i, OV + 9 + 2*i)
if CFG["ORD"]:
    wait_tile(19)
    read_wfrags(19, 64, agpr=True)
    wait_tile(20)
    read_wfrags(20, 96, agpr=True)
    e("s_waitcnt lgkmcnt(0)")
    for db in range(8):
        e(f"v_mfma_f32_16x16x32_bf16 {vr(vP+4*db,4)}, {ar(64+4*db,4)}, {vr(vH,4)}, 0")
for db in range(8):
    e(f"v_mfma_f32_16x16x32_bf16 {vr(vACC+4*db,4)}, {ar(96+4*db,4)}, {vr(vO,4)}, 0")
if CFG["HO"]: addr_final()
if CFG["ORD"]: select_F(FB, vP)
select_F(FA)
e.vmem(f"buffer_store_dwordx4 {vr(FA,4)}, v{aF}, {srd('ws')}, s{sFP} offen{ST}", "st")
e.vmem(f"buffer_store_dwordx4 {vr(FB,4)}, v{aF}, {srd('ws')}, s{sFP} offen offset:128{ST}", "st")
stamp()
if CFG["ACK"] & 1:
    e.wait_all(); stamp()
if not CFG["HO"]: addr_final()
FG = vS
f_loads = [f"buffer_load_dwordx4 {vr(FG,4)}, v{aFG}, {srd('ws')}, s{sT+2} offen{LD}",
           f"buffer_load_dwordx4 {vr(FG+4,4)}, v{aFG}, {srd('ws')}, s{sT+2} offen offset:128{LD}"]
gather(f_loads, "fg", 1)
e(f"s_lshl_b32 s{sT}, s{sT}, 11"); e(f"s_lshl_b32 s{sT+1}, s{sT+1}, 5"); e(f"s_add_u32 s{sT}, s{sT}, s{sT+1}")
e(f"s_lshl_b32 s{sT+4}, s{sT+4}, 4"); e(f"s_add_u32 s{sT}, s{sT}, s{sT+4}")
e(f"v_and_b32 v{g0+8}, 7, v{vLANE}"); e(f"v_bfrev_b32 v{g0+8}, v{g0+8}"); e(f"v_lshrrev_b32 v{g0+8}, 28, v{g0+8}")
e.vmem(f"buffer_load_ushort v{g0+9}, v{g0+8}, {srd('x')}, s{sT} offen", "xr")
e(f"s_lshl_b32 s{sT+1}, s{sW}, 6"); e(f"s_add_u32 s{sT+1}, s{sT+1}, {L_FR}")
e(f"v_and_b32 v{g0+11}, 1, v{vLANE}"); e(f"v_lshl_add_u32 v{g0+11}, v{G_}, 1, v{g0+11}")
e(f"v_lshlrev_b32 v{g0+11}, 3, v{g0+11}"); e(f"v_add_u32 v{g0+11}, s{sT+1}, v{g0+11}")
e(f"v_and_b32 v{g0+12}, 7, v{vLANE}"); e(f"v_lshlrev_b32 v{g0+12}, 3, v{g0+12}"); e(f"v_add_u32 v{g0+12}, {L_FR}, v{g0+12}")
e.wait_vm("fg", "xr")
if CFG["FINE2"]: stamp()
check_tags([], f_loads, g0, g0+1, emb=(FG, FG+4), tmp=g0+2)
if CFG["FINE2"]: stamp()
for i in range(8): e(f"v_and_b32 v{FG+i}, s{sM24}, v{FG+i}")
for i in range(0, 8, 2): e(f"v_permlane32_swap_b32 v{FG+i}, v{FG+i+1}")
for i in range(0, 8, 2): e(f"v_add_f32 v{FG+i}, v{FG+i}, v{FG+i+1}")
for i in (0, 4): e(f"v_permlane16_swap_b32 v{FG+i}, v{FG+i+2}")
e(f"v_add_f32 v{FG}, v{FG}, v{FG+2}"); e(f"v_add_f32 v{FG+1}, v{FG+4}, v{FG+6}")
for r in (2, 4, 8):
    row_sum(FG, (r,)); row_sum(FG+1, (r,))
e("s_mov_b32 exec_lo, 0x00030003"); e("s_mov_b32 exec_hi, 0x00030003")
e(f"ds_write_b64 v{g0+11}, {vr(FG,2)}")
e("s_waitcnt lgkmcnt(0)")
e("s_barrier")
e(f"s_cmp_lg_u32 s{sW}, 0")
e("s_cbranch_scc1 FIN")
e("s_mov_b32 exec_lo, 0xff"); e("s_mov_b32 exec_hi, 0")
for w in range(4):
    e(f"ds_read_b64 {vr(FG+2+2*w,2)}, v{g0+12} offset:{w*64}")
e(f"v_lshlrev_b32 v{g0+4}, 16, v{g0+9}")
e("s_waitcnt lgkmcnt(0)")
a = FG + 2
e(f"v_pk_add_f32 {vr(a,2)}, {vr(a,2)}, {vr(a+2,2)}"); e(f"v_pk_add_f32 {vr(a+4,2)}, {vr(a+4,2)}, {vr(a+6,2)}")
e(f"v_pk_add_f32 {vr(a,2)}, {vr(a,2)}, {vr(a+4,2)}")
bf16_round_pair(g0+2, a, a+1); unpack(g0+2, a, a+1)
e(f"v_add_f32 v{a}, v{a}, v{g0+4}")
bf16_round_pair(g0+2, a, a); e(f"v_lshlrev_b32 v{a}, 16, v{g0+2}")
e(f"v_add_f32 v{a}, v{a}, v{a+1}")
bf16_round_pair(g0+2, a, a)
e(f"buffer_store_short v{g0+2}, v{g0+8}, {srd('out')}, s{sT} offen")
e("s_cmp_lg_u32 s2, 0")
e("s_cbranch_scc1 FIN")
e("s_mov_b32 exec_lo, 1")
e(f"v_mov_b32 v{g0+3}, 0")
e(f"buffer_store_dword v{vTAG}, v{g0+3}, {srd('ws')}, 0 offen{ST}")
e("FIN:")
if DBG:
    stamp()
    e("s_mov_b32 exec_lo, -1"); e("s_mov_b32 exec_hi, 0")
    e(f"s_lshl_b32 s{sT}, s2, 2"); e(f"s_add_u32 s{sT}, s{sT}, s{sW}"); e(f"s_lshl_b32 s{sT}, s{sT}, 7"); e(f"s_add_u32 s{sT}, s{sT}, {WS_DBG}")
    e(f"v_lshlrev_b32 v{g0+3}, 2, v{vLANE}")
    e(f"buffer_store_dword v255, v{g0+3}, {srd('ws')}, s{sT} offen")
e("s_endpgm")
body = list(e.lines)
for s in slow: body += s
body += ["DONE:", "s_endpgm", "CODE_END:"]
body, nn = fix_hazards(body)

hdr = open(os.path.join(os.path.dirname(os.path.abspath(__file__)), "..", "cdna_kernels", NAME + ".s.ref")).read().split("\n")
hdr = [l for l in hdr if l.startswith(";") and "@launch" not in l and "Override" not in l and "grid=ceil" not in l]
out = hdr + [f"; @launch grid=(256,1,1) block=(256,1,1) lds={LDS_BYTES}",
             '.amdgcn_target "amdgcn-amd-amdhsa--gfx950"', ".text", f".globl {NAME}_kernel", ".p2align 8",
             f".type {NAME}_kernel,@function", f"{NAME}_kernel:"]
out += [("" if l.endswith(":") else "    ") + l for l in body]
out += ['.section .rodata,"a"', ".p2align 6", f".amdhsa_kernel {NAME}_kernel",
        "  .amdhsa_next_free_vgpr 512", "  .amdhsa_next_free_sgpr 102", "  .amdhsa_accum_offset 256",
        "  .amdhsa_float_denorm_mode_32 3",
        "  .amdhsa_group_segment_fixed_size 0", "  .amdhsa_kernarg_size 96", "  .amdhsa_user_sgpr_count 2",
        "  .amdhsa_user_sgpr_kernarg_segment_ptr 1", "  .amdhsa_system_sgpr_workgroup_id_x 1", ".end_amdhsa_kernel", ""]
open(sys.argv[1], "w").write("\n".join(out))
print("lines", len(body), "nops inserted", nn, "lds", LDS_BYTES, "stamps", nstamp[0], file=sys.stderr)
```
